```python
import torch

def _softmax(x, axis=-1):
    return torch.softmax(x, dim=axis)
def _gelu(x):
    return torch.nn.functional.gelu(x, approximate="tanh")
def _silu(x):
    return torch.nn.functional.silu(x)
def _sigmoid(x):
    return torch.sigmoid(x)
def _layernorm(x, axis=-1, eps=1e-5):
    m = x.mean(dim=axis, keepdim=True)
    v = x.var(dim=axis, keepdim=True, unbiased=False)
    return (x - m) / torch.sqrt(v + eps)
def _scatter_add(tgt, idx, src, axis=0):
    return tgt.clone().index_add_(axis, idx, src)
def _segment_sum(src, seg, n):
    out = torch.zeros((n,) + src.shape[1:], dtype=src.dtype)
    return out.index_add_(0, seg, src)
def _pad(x, pw):
    flat = tuple(v for pair in reversed(pw) for v in pair)
    return torch.nn.functional.pad(x, flat)

kernel_name = 'sequential_preLN__spectral_gfnet__glu_gated_geglu__prompt'

def setup_inputs():

    _w = (lambda a: (lambda t: t.to(torch.bfloat16) if t.is_floating_point() else t)(torch.as_tensor(a)))
    def _A_setup():
        B, S, D = 1, 2048, 1024
        Df = D // 2 + 1
        return {
            "x": _w((lambda *s: torch.randn(*s, dtype=torch.bfloat16) * 0.05)(B, S, D)),
            "w_r": _w((lambda *s: torch.randn(*s, dtype=torch.bfloat16) * 0.4)(S, Df) * 0.02),
            "w_i": _w((lambda *s: torch.randn(*s, dtype=torch.bfloat16) * 0.4)(S, Df) * 0.02),
        }
    _A_in = _A_setup()

    def _B_setup():
        B, S, Dm, Df = 1, 2048, 1024, 3584
        return {
            "x": _w((lambda *s: torch.randn(*s, dtype=torch.bfloat16) * 0.05)(B, S, Dm)),
            "w_gate": _w((lambda *s: torch.randn(*s, dtype=torch.bfloat16) * 0.4)(Dm, Df) * (Dm ** -0.5)),
            "w_up": _w((lambda *s: torch.randn(*s, dtype=torch.bfloat16) * 0.4)(Dm, Df) * (Dm ** -0.5)),
            "w_down": _w((lambda *s: torch.randn(*s, dtype=torch.bfloat16) * 0.4)(Df, Dm) * (Df ** -0.5)),
        }
    _B_in = _B_setup()

    return {
        "A_x": _A_in["x"],
        "A_w_r": _A_in["w_r"],
        "A_w_i": _A_in["w_i"],
        "B_x": _B_in["x"],
        "B_w_gate": _B_in["w_gate"],
        "B_w_up": _B_in["w_up"],
        "B_w_down": _B_in["w_down"],
    }

def reference(A_x, A_w_r, A_w_i, B_x, B_w_gate, B_w_up, B_w_down):
    def _A_ref(x, w_r, w_i):
        B, S, D = x.shape
        X = (lambda x, axes=(-2,-1): torch.fft.rfft2(x.float(), dim=axes))(x, axes=(-2, -1))
        W = w_r + 1j * w_i
        X = X * W
        y = (lambda x, s, axes=(-2,-1): torch.fft.irfft2(x, s=s, dim=axes).to(torch.bfloat16))(X, (S, D), axes=(-2, -1))
        return y

    def _B_ref(x, w_gate, w_up, w_down):
        g = torch.einsum("bsd,df->bsf", x, w_gate)
        u = torch.einsum("bsd,df->bsf", x, w_up)
        h = _gelu(g) * u
        return torch.einsum("bsf,fd->bsd", h, w_down)

    x = A_x
    h = x + _A_ref(_layernorm(x, axis=-1), A_w_r, A_w_i)
    h2 = h + _B_ref(_layernorm(h, axis=-1), B_w_gate, B_w_up, B_w_down)
    return h2
```

```python
class E:
    def __init__(self):
        self.lines = []
    def __call__(self, s):
        self.lines.append("    " + s)
    def label(self, s):
        self.lines.append(s + ":")
    def raw(self, s):
        self.lines.append(s)
    def c(self, s):
        self.lines.append("    ; " + s)
    def text(self):
        return "\n".join(self.lines) + "\n"

    def nop(self, n):
        while n > 0:
            k = min(n, 16)
            self(f"s_nop {k-1}")
            n -= k

    def srd(self, d, ptr, nbytes, off=0):
        if off:
            self(f"s_add_u32 s{d}, s{ptr}, {off & 0xffffffff:#x}")
            self(f"s_addc_u32 s{d+1}, s{ptr+1}, {off >> 32:#x}")
            self(f"s_and_b32 s{d+1}, s{d+1}, 0xffff")
        else:
            self(f"s_mov_b32 s{d}, s{ptr}")
            self(f"s_and_b32 s{d+1}, s{ptr+1}, 0xffff")
        self(f"s_mov_b32 s{d+2}, {nbytes:#x}")
        self(f"s_mov_b32 s{d+3}, 0x00020000")

    def wave_sum(self, v, t, s0):
        self.nop(2)
        self(f"v_add_f32_dpp v{t}, v{v}, v{v} quad_perm:[1,0,3,2] row_mask:0xf bank_mask:0xf")
        self.nop(2)
        self(f"v_add_f32_dpp v{v}, v{t}, v{t} quad_perm:[2,3,0,1] row_mask:0xf bank_mask:0xf")
        self.nop(2)
        self(f"v_add_f32_dpp v{t}, v{v}, v{v} row_half_mirror row_mask:0xf bank_mask:0xf")
        self.nop(2)
        self(f"v_add_f32_dpp v{v}, v{t}, v{t} row_mirror row_mask:0xf bank_mask:0xf")
        self.nop(2)
        for i in range(4):
            self(f"v_readlane_b32 s{s0+i}, v{v}, {16*i}")
        self.nop(2)
        self(f"v_mov_b32 v{v}, s{s0}")
        for i in range(1, 4):
            self(f"v_add_f32 v{v}, s{s0+i}, v{v}")

    def bf16_round(self, v, t=None):
        self(f"v_cvt_pk_bf16_f32 v{v}, v{v}, v{v}")
        self(f"v_lshlrev_b32 v{v}, 16, v{v}")

def f32hex(x):
    import struct
    return "0x%08x" % struct.unpack("<I", struct.pack("<f", x))[0]

SQH = f32hex(0.7071067811865476)

def cadd(e, d, a, b):
    e(f"v_add_f32 v{d[0]}, v{a[0]}, v{b[0]}")
    e(f"v_add_f32 v{d[1]}, v{a[1]}, v{b[1]}")
def csub(e, d, a, b):
    e(f"v_sub_f32 v{d[0]}, v{a[0]}, v{b[0]}")
    e(f"v_sub_f32 v{d[1]}, v{a[1]}, v{b[1]}")
def cadd_rot(e, d, a, b, sg):
    if sg < 0:
        e(f"v_add_f32 v{d[0]}, v{a[0]}, v{b[1]}")
        e(f"v_sub_f32 v{d[1]}, v{a[1]}, v{b[0]}")
    else:
        e(f"v_sub_f32 v{d[0]}, v{a[0]}, v{b[1]}")
        e(f"v_add_f32 v{d[1]}, v{a[1]}, v{b[0]}")
def csub_rot(e, d, a, b, sg):
    cadd_rot(e, d, a, b, -sg)

def radix4(e, sg, b, out, c):
    cadd(e, c[0], b[0], b[2])
    csub(e, c[2], b[0], b[2])
    cadd(e, c[1], b[1], b[3])
    csub(e, c[3], b[1], b[3])
    cadd(e, out[0], c[0], c[1])
    csub(e, out[2], c[0], c[1])
    cadd_rot(e, out[1], c[2], c[3], sg)
    csub_rot(e, out[3], c[2], c[3], sg)

def mul_w8(e, sg, d, a, ssq):
    if sg < 0:
        e(f"v_add_f32 v{d[0]}, v{a[0]}, v{a[1]}")
        e(f"v_sub_f32 v{d[1]}, v{a[1]}, v{a[0]}")
    else:
        e(f"v_sub_f32 v{d[0]}, v{a[0]}, v{a[1]}")
        e(f"v_add_f32 v{d[1]}, v{a[1]}, v{a[0]}")
    e(f"v_mul_f32 v{d[0]}, s{ssq}, v{d[0]}")
    e(f"v_mul_f32 v{d[1]}, s{ssq}, v{d[1]}")

def radix8(e, sg, a, out, t, pq, c, ssq):
    for i in range(4):
        cadd(e, t[i], a[i], a[i+4])
        csub(e, t[i+4], a[i], a[i+4])
    radix4(e, sg, t[0:4], [out[0], out[2], out[4], out[6]], c)
    mul_w8(e, sg, pq[0], t[5], ssq)
    mul_w8(e, sg, pq[1], t[7], ssq)
    cadd_rot(e, c[0], t[4], t[6], sg)
    csub_rot(e, c[2], t[4], t[6], sg)
    cadd_rot(e, c[1], pq[0], pq[1], sg)
    csub_rot(e, c[3], pq[0], pq[1], sg)
    cadd(e, out[1], c[0], c[1])
    csub(e, out[5], c[0], c[1])
    cadd_rot(e, out[3], c[2], c[3], sg)
    csub_rot(e, out[7], c[2], c[3], sg)

def cmul_tw(e, d, a, w, conj, tmp):
    t0, t1 = tmp
    e(f"v_mul_f32 v{t0}, v{a[0]}, v{w[0]}")
    e(f"v_mul_f32 v{t1}, v{a[1]}, v{w[0]}")
    if not conj:
        e(f"v_fma_f32 v{t0}, -v{a[1]}, v{w[1]}, v{t0}")
        e(f"v_fma_f32 v{d[1]}, v{a[0]}, v{w[1]}, v{t1}")
    else:
        e(f"v_fma_f32 v{t0}, v{a[1]}, v{w[1]}, v{t0}")
        e(f"v_fma_f32 v{d[1]}, -v{a[0]}, v{w[1]}, v{t1}")
    e(f"v_mov_b32 v{d[0]}, v{t0}")

def twiddles(e, vbase, rs, w, tmp):
    for i, r in enumerate(rs):
        if r == 1:
            e(f"v_cos_f32 v{w[i][0]}, v{vbase}")
            e(f"v_sin_f32 v{w[i][1]}, v{vbase}")
        else:
            e(f"v_mul_f32 v{tmp}, {float(r)}, v{vbase}") if r in (2, 4) else (
                e(f"v_mul_f32 v{tmp}, {f32hex(float(r))}, v{vbase}"))
            e(f"v_cos_f32 v{w[i][0]}, v{tmp}")
            e(f"v_sin_f32 v{w[i][1]}, v{tmp}")
    e.nop(1)
    for i in range(len(rs)):
        e(f"v_sub_f32 v{w[i][1]}, 0, v{w[i][1]}")
```

```python
from emit import *

XF_OFF = 0
XF_BYTES = 513 * 2048 * 8
LN2_OFF = 0x1000000
LN2_BYTES = 2048 * 1024 * 2
X_BYTES = 2048 * 1024 * 2
W_BYTES = 2048 * 513 * 2

def cpx(base, n):
    return [(base + 2 * i, base + 2 * i + 1) for i in range(n)]

def kernel_header(e, name):
    e.raw(f".globl {name}")
    e.raw(".p2align 8")
    e.raw(f".type {name},@function")
    e.label(name)

def layernorm16(e, xs, vm, vv, vt, vr, vq, seps):
    e(f"v_add_f32 v{vm}, v{xs[0]}, v{xs[1]}")
    for i in range(2, 16):
        e(f"v_add_f32 v{vm}, v{vm}, v{xs[i]}")
    e.wave_sum(vm, vt, 20)
    e(f"v_mul_f32 v{vm}, {f32hex(1.0/1024)}, v{vm}")
    e(f"v_sub_f32 v{vt}, v{xs[0]}, v{vm}")
    e(f"v_mul_f32 v{vv}, v{vt}, v{vt}")
    for i in range(1, 16):
        e(f"v_sub_f32 v{vt}, v{xs[i]}, v{vm}")
        e(f"v_fmac_f32 v{vv}, v{vt}, v{vt}")
    e.wave_sum(vv, vt, 20)
    e(f"v_mul_f32 v{vv}, {f32hex(1.0/1024)}, v{vv}")
    e.bf16_round(vm)
    e.bf16_round(vv)
    e(f"v_add_f32 v{vv}, s{seps}, v{vv}")
    e.bf16_round(vv)
    e(f"v_sqrt_f32 v{vv}, v{vv}")
    e.nop(1)
    e.bf16_round(vv)
    e(f"v_rcp_f32 v{vr}, v{vv}")
    e.nop(1)
    for x in xs:
        e(f"v_sub_f32 v{x}, v{x}, v{vm}")
        e.bf16_round(x)
        e(f"v_mul_f32 v{vq}, v{x}, v{vr}")
        e(f"v_fma_f32 v{vt}, -v{vq}, v{vv}, v{x}")
        e(f"v_fma_f32 v{x}, v{vt}, v{vr}, v{vq}")
        e.bf16_round(x)

def gen_k1(e):
    name = "k1_kernel"
    kernel_header(e, name)
    e("s_cmp_ge_u32 s2, 256")
    e("s_cbranch_scc1 K1_END")
    e("s_load_dwordx2 s[4:5], s[0:1], 0")
    e("s_load_dwordx2 s[6:7], s[0:1], 72")
    e("v_and_b32 v1, 63, v0")
    e("v_lshrrev_b32 v2, 6, v0")
    e("s_waitcnt lgkmcnt(0)")
    e.srd(8, 4, X_BYTES)
    e.srd(12, 6, XF_BYTES, XF_OFF)
    e(f"s_mov_b32 s16, {SQH}")
    e(f"s_mov_b32 s17, {f32hex(1e-5)}")
    e("s_lshl_b32 s18, s2, 14")
    e("v_lshlrev_b32 v3, 11, v2")
    e("v_lshl_add_u32 v3, v1, 2, v3")
    for r in range(8):
        e(f"buffer_load_dword v{10+r}, v3, s[8:11], s18 offen offset:{256*r}")
    a = cpx(20, 8); b = cpx(36, 8); t = cpx(52, 8); pq = cpx(68, 2); c = cpx(72, 4); tw = cpx(80, 7)
    e("v_mul_u32_u24 v4, 4128, v2")
    e("v_lshl_add_u32 v5, v1, 6, v4")
    e("v_lshl_add_u32 v6, v1, 3, v4")
    e("v_lshrrev_b32 v7, 3, v1")
    e("v_lshlrev_b32 v7, 9, v7")
    e("v_and_b32 v8, 7, v1")
    e("v_lshl_add_u32 v7, v8, 3, v7")
    e("v_add_u32 v7, v7, v4")
    e("s_waitcnt vmcnt(0)")
    for r in range(8):
        e(f"v_lshlrev_b32 v{a[r][0]}, 16, v{10+r}")
        e(f"v_and_b32 v{a[r][1]}, 0xffff0000, v{10+r}")
    xs = [x for p in a for x in p]
    layernorm16(e, xs, 94, 95, 96, 97, 98, 17)
    radix8(e, -1, a, b, t, pq, c, 16)
    for i in range(4):
        e(f"ds_write_b128 v5, v[{b[2*i][0]}:{b[2*i][0]+3}] offset:{16*i}")
    for r in range(8):
        e(f"ds_read_b64 v[{a[r][0]}:{a[r][1]}], v6 offset:{512*r}")
    e("v_cvt_f32_u32 v99, v8")
    e(f"v_mul_f32 v99, {f32hex(1.0/64)}, v99")
    twiddles(e, 99, range(1, 8), tw, 98)
    e("s_waitcnt lgkmcnt(0)")
    for r in range(1, 8):
        cmul_tw(e, a[r], a[r], tw[r-1], False, (94, 95))
    radix8(e, -1, a, b, t, pq, c, 16)
    for r in range(8):
        e(f"ds_write_b64 v7, v[{b[r][0]}:{b[r][1]}] offset:{64*r}")
    for r in range(8):
        e(f"ds_read_b64 v[{a[r][0]}:{a[r][1]}], v6 offset:{512*r}")
    e("v_cvt_f32_u32 v99, v1")
    e(f"v_mul_f32 v99, {f32hex(1.0/512)}, v99")
    twiddles(e, 99, range(1, 8), tw, 98)
    e("s_waitcnt lgkmcnt(0)")
    for r in range(1, 8):
        cmul_tw(e, a[r], a[r], tw[r-1], False, (94, 95))
    radix8(e, -1, a, b, t, pq, c, 16)
    for r in range(8):
        e(f"ds_write_b64 v6, v[{b[r][0]}:{b[r][1]}] offset:{512*r}")
    e("s_waitcnt lgkmcnt(0)")
    e("s_barrier")
    e("v_and_b32 v2, 7, v0")
    e("v_lshrrev_b32 v3, 3, v0")
    e("v_mul_u32_u24 v4, 4128, v2")
    e("s_lshl_b32 s18, s2, 6")
    e("v_lshlrev_b32 v5, 3, v2")
    e("v_add_u32 v5, s18, v5")
    for i in range(5):
        z1 = (20 + 4*i, 21 + 4*i); z2 = (22 + 4*i, 23 + 4*i)
        e(f"v_add_u32 v6, {64*i}, v3")
        e(f"v_sub_u32 v7, 512, v6")
        e(f"v_and_b32 v7, 511, v7")
        e(f"v_lshl_add_u32 v8, v6, 3, v4")
        e(f"v_lshl_add_u32 v9, v7, 3, v4")
        if i == 4:
            e("v_and_b32 v8, 0x7fff, v8")
        e(f"ds_read_b64 v[{z1[0]}:{z1[1]}], v8")
        e(f"ds_read_b64 v[{z2[0]}:{z2[1]}], v9")
    e("s_waitcnt lgkmcnt(0)")
    for i in range(5):
        z1 = (20 + 4*i, 21 + 4*i); z2 = (22 + 4*i, 23 + 4*i)
        if i == 4:
            e("v_cmp_gt_u32 vcc, 8, v0")
            e("s_and_saveexec_b64 s[24:25], vcc")
            e("s_cbranch_execz K1_END")
        e(f"v_add_u32 v6, {64*i}, v3")
        e("v_cvt_f32_u32 v60, v6")
        e(f"v_mul_f32 v60, {f32hex(1.0/1024)}, v60")
        e("v_cos_f32 v61, v60")
        e("v_sin_f32 v62, v60")
        e(f"v_add_f32 v50, v{z1[0]}, v{z2[0]}")
        e(f"v_sub_f32 v51, v{z1[1]}, v{z2[1]}")
        e(f"v_add_f32 v52, v{z1[1]}, v{z2[1]}")
        e(f"v_sub_f32 v53, v{z2[0]}, v{z1[0]}")
        e("v_mul_f32 v54, v52, v61")
        e("v_fmac_f32 v54, v53, v62")
        e("v_mul_f32 v55, v53, v61")
        e("v_fma_f32 v55, -v52, v62, v55")
        e("v_add_f32 v56, v50, v54")
        e("v_add_f32 v57, v51, v55")
        e("v_sub_f32 v58, v50, v54")
        e("v_sub_f32 v59, v55, v51")
        e("v_lshl_add_u32 v8, v6, 14, v5")
        e("v_sub_u32 v7, 512, v6")
        e("v_lshl_add_u32 v9, v7, 14, v5")
        e("buffer_store_dwordx2 v[56:57], v8, s[12:15], 0 offen")
        e("buffer_store_dwordx2 v[58:59], v9, s[12:15], 0 offen")
        e.nop(2)
    e.label("K1_END")
    e("s_endpgm")

def fft2048(e, sg, a, b, t, pq, c, tw2, tw3, tw4, vW1, vW2, vW3, vR, reg0, reg1):
    conj = sg > 0
    radix8(e, sg, a, b, t, pq, c, 16)
    for i in range(4):
        e(f"ds_write_b128 v{vW1}, v[{b[2*i][0]}:{b[2*i][0]+3}] offset:{reg0+16*i}")
    e("s_waitcnt lgkmcnt(0)")
    e("s_barrier")
    for r in range(8):
        e(f"ds_read_b64 v[{a[r][0]}:{a[r][1]}], v{vR} offset:{reg0+2048*r}")
    e("s_waitcnt lgkmcnt(0)")
    for r in range(1, 8):
        cmul_tw(e, a[r], a[r], tw2[r-1], conj, (94, 95))
    radix8(e, sg, a, b, t, pq, c, 16)
    for r in range(8):
        e(f"ds_write_b64 v{vW2}, v[{b[r][0]}:{b[r][1]}] offset:{reg1+64*r}")
    e("s_waitcnt lgkmcnt(0)")
    e("s_barrier")
    for r in range(8):
        e(f"ds_read_b64 v[{a[r][0]}:{a[r][1]}], v{vR} offset:{reg1+2048*r}")
    e("s_waitcnt lgkmcnt(0)")
    for r in range(1, 8):
        cmul_tw(e, a[r], a[r], tw3[r-1], conj, (94, 95))
    radix8(e, sg, a, b, t, pq, c, 16)
    for r in range(8):
        e(f"ds_write_b64 v{vW3}, v[{b[r][0]}:{b[r][1]}] offset:{reg0+512*r}")
    e("s_waitcnt lgkmcnt(0)")
    e("s_barrier")
    for r in range(8):
        e(f"ds_read_b64 v[{a[r][0]}:{a[r][1]}], v{vR} offset:{reg0+2048*r}")
    e("s_waitcnt lgkmcnt(0)")
    for h in range(2):
        for r in range(1, 4):
            cmul_tw(e, a[2*r+h], a[2*r+h], tw4[h][r-1], conj, (94, 95))
        radix4(e, sg, [a[h], a[2+h], a[4+h], a[6+h]], [b[h], b[2+h], b[4+h], b[6+h]], c)

def gen_k2(e):
    name = "k2_kernel"
    kernel_header(e, name)
    e("s_cmp_ge_u32 s2, 513")
    e("s_cbranch_scc1 K2_END")
    e("s_load_dwordx4 s[4:7], s[0:1], 8")
    e("s_load_dwordx2 s[28:29], s[0:1], 72")
    e("s_waitcnt lgkmcnt(0)")
    e.srd(8, 4, W_BYTES)
    e.srd(32, 6, W_BYTES)
    e.srd(12, 28, XF_BYTES, XF_OFF)
    e(f"s_mov_b32 s16, {SQH}")
    e("s_lshl_b32 s17, s2, 14")
    a = cpx(20, 8); b = cpx(36, 8); t = cpx(52, 8); pq = cpx(68, 2); c = cpx(72, 4)
    tw2 = cpx(100, 7); tw3 = cpx(114, 7); tw4 = [cpx(128, 3), cpx(134, 3)]
    wv = list(range(140, 156))
    e("v_lshlrev_b32 v1, 3, v0")
    for q in range(8):
        e(f"s_add_u32 s{40+q}, s17, {2048*q}")
    for q in range(8):
        e(f"buffer_load_dwordx2 v[{a[q][0]}:{a[q][1]}], v1, s[12:15], s{40+q} offen")
    e("v_mul_u32_u24 v2, 1026, v0")
    e("s_lshl_b32 s18, s2, 1")
    e("v_add_u32 v2, s18, v2")
    for q in range(8):
        e(f"s_mov_b32 s{50+q}, {262656*q}")
    for q in range(8):
        e(f"buffer_load_ushort v{wv[2*q]}, v2, s[8:11], s{50+q} offen")
        e(f"buffer_load_ushort v{wv[2*q+1]}, v2, s[32:35], s{50+q} offen")
    e("v_lshlrev_b32 v3, 6, v0")
    e("v_lshrrev_b32 v4, 3, v0")
    e("v_lshlrev_b32 v4, 9, v4")
    e("v_and_b32 v5, 7, v0")
    e("v_lshl_add_u32 v4, v5, 3, v4")
    e("v_lshrrev_b32 v6, 6, v0")
    e("v_lshlrev_b32 v6, 12, v6")
    e("v_and_b32 v7, 63, v0")
    e("v_lshl_add_u32 v6, v7, 3, v6")
    e("v_cvt_f32_u32 v99, v5")
    e(f"v_mul_f32 v99, {f32hex(1.0/64)}, v99")
    twiddles(e, 99, range(1, 8), tw2, 98)
    e("v_cvt_f32_u32 v99, v7")
    e(f"v_mul_f32 v99, {f32hex(1.0/512)}, v99")
    twiddles(e, 99, range(1, 8), tw3, 98)
    e("v_cvt_f32_u32 v99, v0")
    e(f"v_mul_f32 v99, {f32hex(1.0/2048)}, v99")
    twiddles(e, 99, range(1, 4), tw4[0], 98)
    e(f"v_add_f32 v99, {f32hex(0.125)}, v99")
    twiddles(e, 99, range(1, 4), tw4[1], 98)
    e("s_waitcnt vmcnt(16)")
    fft2048(e, -1, a, b, t, pq, c, tw2, tw3, tw4, 3, 4, 6, 1, 0, 16384)
    e("s_waitcnt vmcnt(0)")
    sc = f32hex(2.0 ** -22)
    for q in range(8):
        e(f"v_lshlrev_b32 v{wv[2*q]}, 16, v{wv[2*q]}")
        e(f"v_lshlrev_b32 v{wv[2*q+1]}, 16, v{wv[2*q+1]}")
        e(f"v_mul_f32 v{wv[2*q]}, {sc}, v{wv[2*q]}")
        e(f"v_mul_f32 v{wv[2*q+1]}, {sc}, v{wv[2*q+1]}")
        cmul_tw(e, a[q], b[q], (wv[2*q], wv[2*q+1]), False, (94, 95))
    fft2048(e, +1, a, b, t, pq, c, tw2, tw3, tw4, 3, 4, 6, 1, 16384, 0)
    for q in range(8):
        e(f"buffer_store_dwordx2 v[{b[q][0]}:{b[q][1]}], v1, s[12:15], s{40+q} offen")
    e.label("K2_END")
    e("s_endpgm")

def gen_k3(e):
    name = "k3_kernel"
    kernel_header(e, name)
    e("s_cmp_ge_u32 s2, 256")
    e("s_cbranch_scc1 K3_END")
    e("s_load_dwordx2 s[4:5], s[0:1], 0")
    e("s_load_dwordx2 s[6:7], s[0:1], 72")
    e("s_load_dwordx2 s[28:29], s[0:1], 56")
    e("v_and_b32 v1, 63, v0")
    e("v_lshrrev_b32 v2, 6, v0")
    e("s_waitcnt lgkmcnt(0)")
    e.srd(8, 4, X_BYTES)
    e.srd(12, 6, XF_BYTES, XF_OFF)
    e.srd(32, 28, X_BYTES)
    e.srd(36, 6, LN2_BYTES, LN2_OFF)
    e(f"s_mov_b32 s16, {SQH}")
    e(f"s_mov_b32 s17, {f32hex(1e-5)}")
    e("s_lshl_b32 s19, s2, 14")
    e("v_lshlrev_b32 v3, 11, v2")
    e("v_lshl_add_u32 v3, v1, 2, v3")
    for r in range(8):
        e(f"buffer_load_dword v{100+r}, v3, s[8:11], s19 offen offset:{256*r}")
    e("v_and_b32 v10, 7, v0")
    e("v_lshrrev_b32 v11, 3, v0")
    e("v_mul_u32_u24 v12, 4128, v10")
    e("s_lshl_b32 s18, s2, 6")
    e("v_lshlrev_b32 v13, 3, v10")
    e("v_add_u32 v13, s18, v13")
    for i in range(5):
        y1 = (20 + 4*i, 21 + 4*i); y2 = (22 + 4*i, 23 + 4*i)
        e(f"v_add_u32 v6, {64*i}, v11")
        if i == 4:
            e("v_min_u32 v6, 256, v6")
        e("v_sub_u32 v7, 512, v6")
        e("v_lshl_add_u32 v8, v6, 14, v13")
        e("v_lshl_add_u32 v9, v7, 14, v13")
        e(f"buffer_load_dwordx2 v[{y1[0]}:{y1[1]}], v8, s[12:15], 0 offen")
        e(f"buffer_load_dwordx2 v[{y2[0]}:{y2[1]}], v9, s[12:15], 0 offen")
    e("s_waitcnt vmcnt(0)")
    for i in range(5):
        y1 = (20 + 4*i, 21 + 4*i); y2 = (22 + 4*i, 23 + 4*i)
        e(f"v_add_u32 v6, {64*i}, v11")
        if i == 0:
            e("v_cmp_eq_u32 vcc, 0, v6")
            e.nop(2)
            e(f"v_cndmask_b32 v{y1[1]}, v{y1[1]}, 0, vcc") if False else None
            e(f"v_mov_b32 v60, 0")
            e(f"v_cndmask_b32 v{y1[1]}, v{y1[1]}, v60, vcc")
            e(f"v_cndmask_b32 v{y2[1]}, v{y2[1]}, v60, vcc")
        if i == 4:
            e("v_cmp_gt_u32 vcc, 8, v0")
            e("s_and_saveexec_b64 s[24:25], vcc")
            e("s_cbranch_execz K3_SKIP")
        e("v_cvt_f32_u32 v60, v6")
        e(f"v_mul_f32 v60, {f32hex(1.0/1024)}, v60")
        e("v_cos_f32 v61, v60")
        e("v_sin_f32 v62, v60")
        e(f"v_add_f32 v50, v{y1[0]}, v{y2[0]}")
        e(f"v_sub_f32 v51, v{y1[1]}, v{y2[1]}")
        e(f"v_sub_f32 v52, v{y1[0]}, v{y2[0]}")
        e(f"v_add_f32 v53, v{y1[1]}, v{y2[1]}")
        e("v_mul_f32 v54, v52, v61")
        e("v_fma_f32 v54, -v53, v62, v54")
        e("v_mul_f32 v55, v53, v61")
        e("v_fmac_f32 v55, v52, v62")
        e("v_sub_f32 v56, v50, v55")
        e("v_add_f32 v57, v51, v54")
        e("v_add_f32 v58, v50, v55")
        e("v_sub_f32 v59, v54, v51")
        e("v_sub_u32 v7, 512, v6")
        e("v_and_b32 v7, 511, v7")
        e("v_lshl_add_u32 v8, v6, 3, v12")
        e("v_lshl_add_u32 v9, v7, 3, v12")
        e("ds_write_b64 v8, v[56:57]")
        e("ds_write_b64 v9, v[58:59]")
    e.label("K3_SKIP")
    e("s_mov_b64 exec, -1")
    e("s_waitcnt lgkmcnt(0)")
    e("s_barrier")
    a = cpx(20, 8); b = cpx(36, 8); t = cpx(52, 8); pq = cpx(68, 2); c = cpx(72, 4); tw = cpx(80, 7)
    e("v_mul_u32_u24 v4, 4128, v2")
    e("v_lshl_add_u32 v5, v1, 6, v4")
    e("v_lshl_add_u32 v6, v1, 3, v4")
    e("v_lshrrev_b32 v7, 3, v1")
    e("v_lshlrev_b32 v7, 9, v7")
    e("v_and_b32 v8, 7, v1")
    e("v_lshl_add_u32 v7, v8, 3, v7")
    e("v_add_u32 v7, v7, v4")
    for r in range(8):
        e(f"ds_read_b64 v[{a[r][0]}:{a[r][1]}], v6 offset:{512*r}")
    e("s_waitcnt lgkmcnt(0)")
    radix8(e, +1, a, b, t, pq, c, 16)
    for i in range(4):
        e(f"ds_write_b128 v5, v[{b[2*i][0]}:{b[2*i][0]+3}] offset:{16*i}")
    for r in range(8):
        e(f"ds_read_b64 v[{a[r][0]}:{a[r][1]}], v6 offset:{512*r}")
    e("v_cvt_f32_u32 v99, v8")
    e(f"v_mul_f32 v99, {f32hex(1.0/64)}, v99")
    twiddles(e, 99, range(1, 8), tw, 98)
    e("s_waitcnt lgkmcnt(0)")
    for r in range(1, 8):
        cmul_tw(e, a[r], a[r], tw[r-1], True, (94, 95))
    radix8(e, +1, a, b, t, pq, c, 16)
    for r in range(8):
        e(f"ds_write_b64 v7, v[{b[r][0]}:{b[r][1]}] offset:{64*r}")
    for r in range(8):
        e(f"ds_read_b64 v[{a[r][0]}:{a[r][1]}], v6 offset:{512*r}")
    e("v_cvt_f32_u32 v99, v1")
    e(f"v_mul_f32 v99, {f32hex(1.0/512)}, v99")
    twiddles(e, 99, range(1, 8), tw, 98)
    e("s_waitcnt lgkmcnt(0)")
    for r in range(1, 8):
        cmul_tw(e, a[r], a[r], tw[r-1], True, (94, 95))
    radix8(e, +1, a, b, t, pq, c, 16)
    for r in range(8):
        e(f"v_cvt_pk_bf16_f32 v{b[r][0]}, v{b[r][0]}, v{b[r][1]}")
        e(f"v_and_b32 v{b[r][1]}, 0xffff0000, v{b[r][0]}")
        e(f"v_lshlrev_b32 v{b[r][0]}, 16, v{b[r][0]}")
        e(f"v_lshlrev_b32 v94, 16, v{100+r}")
        e(f"v_and_b32 v95, 0xffff0000, v{100+r}")
        e(f"v_add_f32 v{b[r][0]}, v{b[r][0]}, v94")
        e(f"v_add_f32 v{b[r][1]}, v{b[r][1]}, v95")
        e(f"v_cvt_pk_bf16_f32 v{10+r}, v{b[r][0]}, v{b[r][1]}")
        e(f"buffer_store_dword v{10+r}, v3, s[32:35], s19 offen offset:{256*r}")
        e(f"v_lshlrev_b32 v{b[r][0]}, 16, v{10+r}")
        e(f"v_and_b32 v{b[r][1]}, 0xffff0000, v{10+r}")
    xs = [x for p in b for x in p]
    layernorm16(e, xs, 94, 95, 96, 97, 98, 17)
    for r in range(8):
        e(f"v_cvt_pk_bf16_f32 v{20+r}, v{b[r][0]}, v{b[r][1]}")
        e(f"buffer_store_dword v{20+r}, v3, s[36:39], s19 offen offset:{256*r}")
    e.label("K3_END")
    e("s_endpgm")
```

```python
from emit import *
import fft_kernels as F
from gemm_kernels import *

def gen_k5(e):
    F.kernel_header(e, "k5_kernel")
    BUF = 32768
    e("s_cmp_ge_u32 s2, 256")
    e("s_cbranch_scc1 K5_END")
    e("s_load_dwordx4 s[4:7], s[0:1], 48")
    e("s_load_dwordx4 s[28:31], s[0:1], 64")
    e("v_and_b32 v1, 63, v0")
    e("v_lshrrev_b32 v2, 6, v0")
    e.nop(1)
    e("v_readfirstlane_b32 s27, v2")
    e("s_waitcnt lgkmcnt(0)")
    e.srd(8, 30, HH_BYTES, HH_OFF)
    e.srd(12, 4, WD_BYTES)
    e.srd(16, 6, F.X_BYTES)
    e.srd(20, 30, PART_BYTES, PART_OFF)
    e.srd(44, 28, 256)
    e("s_and_b32 s3, s2, 7")
    e("s_lshr_b32 s4, s2, 3")
    e("s_and_b32 s38, s3, 1")
    e("s_lshr_b32 s5, s3, 1")
    e("s_and_b32 s5, s5, 1")
    e("s_lshl_b32 s5, s5, 3")
    e("s_and_b32 s6, s4, 7")
    e("s_add_u32 s5, s5, s6")
    e("s_lshr_b32 s6, s3, 2")
    e("s_lshl_b32 s6, s6, 2")
    e("s_lshr_b32 s7, s4, 3")
    e("s_add_u32 s6, s6, s7")
    e("s_lshr_b32 s36, s27, 1")
    e("s_and_b32 s37, s27, 1")
    e("s_lshl_b32 s24, s5, 7")
    e("s_lshl_b32 s3, s27, 5")
    e("s_add_u32 s24, s24, s3")
    e("s_mul_i32 s24, s24, 7168")
    e("s_mul_i32 s3, s38, 3584")
    e("s_add_u32 s24, s24, s3")
    e("s_mul_i32 s25, s38, 1792")
    e("s_lshl_b32 s3, s27, 4")
    e("s_add_u32 s25, s25, s3")
    e("s_lshl_b32 s25, s25, 11")
    e("s_lshl_b32 s3, s6, 8")
    e("s_add_u32 s25, s25, s3")
    e("s_lshl_b32 s30, s27, 12")
    e("s_add_u32 s31, s30, 16384")
    e("v_lshrrev_b32 v3, 3, v1")
    e("v_and_b32 v4, 7, v1")
    e("v_xor_b32 v4, v4, v3")
    e("v_lshlrev_b32 v4, 4, v4")
    e("v_mul_u32_u24 v3, 7168, v3")
    e("v_add_u32 v10, v3, v4")
    e("v_lshrrev_b32 v3, 4, v1")
    e("v_and_b32 v4, 15, v1")
    for b_ in range(2):
        e(f"v_or_b32 v5, {4*b_}, v3")
        e("v_lshlrev_b32 v5, 1, v5")
        e("v_xor_b32 v5, v5, v4")
        e("v_lshlrev_b32 v5, 4, v5")
        e(f"v_lshl_add_u32 v{11+b_}, v3, 11, v5")
    e("v_and_b32 v3, 15, v1")
    e("v_lshrrev_b32 v4, 4, v1")
    e("v_and_b32 v5, 7, v1")
    e("s_lshl_b32 s3, s36, 13")
    for hh in range(2):
        e(f"v_add_u32 v6, {4*hh}, v4")
        e("v_xor_b32 v6, v6, v5")
        e("v_lshlrev_b32 v6, 4, v6")
        e("v_lshl_add_u32 v6, v3, 7, v6")
        e(f"v_add_u32 v{14+hh}, s3, v6")
        e(f"v_add_u32 v{16+hh}, {2*BUF}, v{14+hh}")
    e("v_lshrrev_b32 v5, 2, v3")
    e("v_lshl_add_u32 v6, v4, 3, v5")
    e("v_lshlrev_b32 v6, 8, v6")
    e("v_and_b32 v7, 3, v1")
    e("v_lshl_add_u32 v6, v7, 3, v6")
    e("v_add_u32 v6, 16384, v6")
    e("v_and_b32 v7, 1, v4")
    e("v_lshl_or_b32 v5, v7, 2, v5")
    e("s_lshl_b32 s3, s37, 2")
    for j in range(4):
        e(f"s_add_u32 s4, s3, {j}")
        e("v_xor_b32 v7, s4, v5")
        e(f"v_lshl_add_u32 v{18+j}, v7, 5, v6")
        e(f"v_add_u32 v{22+j}, {2*BUF}, v{18+j}")

    SETS = [dict(A=32, B=48), dict(A=64, B=80)]
    ACC = 128
    def dma(buf):
        g = []
        o = buf * BUF
        for ii in range(4):
            g.append([f"s_add_u32 m0, s30, {o + ii*1024}", f"s_add_u32 s33, s24, {ii*8*7168}",
                      f"buffer_load_dwordx4 v10, s[8:11], s33 offen lds"])
        for ii in range(4):
            g.append([f"s_add_u32 m0, s31, {o + ii*1024}", f"s_add_u32 s33, s25, {ii*8192}",
                      f"buffer_load_dwordx4 v{11+(ii>>1)}, s[12:15], s33 offen lds"])
        return g
    def advance():
        return ["s_add_u32 s24, s24, 128", f"s_add_u32 s25, s25, {64*2048}"]
    def reads(buf, hh, st):
        g = []
        S = SETS[st]
        bh, bl = buf >> 1, buf & 1
        for i in range(4):
            g.append([f"ds_read_b128 v[{S['A']+4*i}:{S['A']+4*i+3}], v{14+2*bh+hh} offset:{bl*BUF+i*2048}"])
        for j in range(4):
            for p in range(2):
                off = bl * BUF + hh * 8192 + p * 1024
                r = S['B'] + 4 * j + 2 * p
                g.append([f"ds_read_b64_tr_b16 v[{r}:{r+1}], v{18+4*bh+j} offset:{off}"])
        return g
    def mfmas(st):
        S = SETS[st]
        m = []
        for j in range(4):
            for i in range(4):
                acc = ACC + (i * 4 + j) * 4
                m.append(f"v_mfma_f32_16x16x32_bf16 v[{acc}:{acc+3}], v[{S['B']+4*j}:{S['B']+4*j+3}], v[{S['A']+4*i}:{S['A']+4*i+3}], v[{acc}:{acc+3}]")
        return m
    for t_ in range(3):
        for grp in dma(t_):
            for x in grp: e(x)
        for x in advance(): e(x)
    for i in range(64):
        e(f"v_mov_b32 v{ACC+i}, 0")
    e("s_waitcnt vmcnt(16)")
    e("s_barrier")
    for grp in reads(0, 0, 0):
        for x in grp: e(x)

    def tile(buf, do_dma, vm, last=False):
        e("s_waitcnt lgkmcnt(0)")
        for x in interleave(mfmas(0), reads(buf, 1, 1), 0, 1): e(x)
        if last:
            e("s_waitcnt lgkmcnt(0)")
            for x in mfmas(1): e(x)
            return
        e(f"s_waitcnt vmcnt({vm}) lgkmcnt(0)")
        e("s_barrier")
        side = reads((buf + 1) & 3, 0, 0)
        if do_dma:
            d = dma((buf + 3) & 3)
            merged = []
            rs = side
            while rs or d:
                if rs: merged.append(rs.pop(0))
                if d: merged.append(d.pop(0))
            side = merged + [advance()]
        for x in interleave(mfmas(1), side, 0, 1): e(x)

    e("s_mov_b32 s26, 0")
    e.label("K5_LOOP")
    for b_ in range(4):
        tile(b_, True, 8)
    e("s_add_u32 s26, s26, 1")
    e("s_cmp_lt_u32 s26, 6")
    e("s_cbranch_scc1 K5_LOOP")
    tile(0, True, 8)
    tile(1, False, 8)
    tile(2, False, 0)
    tile(3, False, 0, last=True)
    e.nop(16)
    e("s_lshl_b32 s39, s5, 3")
    e("s_add_u32 s39, s39, s6")
    e("s_lshr_b32 s40, s39, 1")
    e("s_lshl_b32 s40, s40, 2")
    e("s_and_b32 s41, s39, 1")
    e("s_lshl_b32 s41, s41, 4")
    e("s_lshl_b32 s42, 1, s41")
    e("s_lshl_b32 s43, 0x100, s41")
    e("s_lshl_b32 s34, s39, 16")
    e("s_lshl_b32 s3, s27, 14")
    e("s_add_u32 s34, s34, s3")
    e("v_lshlrev_b32 v5, 4, v1")
    e("s_barrier")
    e("s_cmp_lg_u32 s27, 0")
    e("s_cbranch_scc1 K5_ARR_DONE")
    e("v_mov_b32 v6, s42")
    e("v_mov_b32 v7, s40")
    e("s_mov_b64 exec, 1")
    e("buffer_atomic_add v6, v7, s[44:47], 0 offen sc0 sc1")
    e("s_waitcnt vmcnt(0)")
    e("v_mov_b32 v7, 0")
    e("ds_write_b32 v7, v6")
    e("s_mov_b64 exec, -1")
    e("s_waitcnt lgkmcnt(0)")
    e.label("K5_ARR_DONE")
    e("s_barrier")
    e("v_mov_b32 v7, 0")
    e("ds_read_b32 v6, v7")
    e("s_waitcnt lgkmcnt(0)")
    e.nop(1)
    e("v_readfirstlane_b32 s35, v6")
    e.nop(4)
    e("s_lshr_b32 s35, s35, s41")
    e("s_and_b32 s35, s35, 0xff")
    e("s_cmp_eq_u32 s35, 0")
    e("s_cbranch_scc0 K5_SECOND")
    for q in range(16):
        e(f"buffer_store_dwordx4 v[{ACC+4*q}:{ACC+4*q+3}], v5, s[20:23], s34 offen offset:{q*1024 if q < 4 else 0} sc1") if q < 4 else (
            e(f"s_add_u32 s33, s34, {q*1024}"), e(f"buffer_store_dwordx4 v[{ACC+4*q}:{ACC+4*q+3}], v5, s[20:23], s33 offen sc1"))
    e("s_waitcnt vmcnt(0)")
    e("s_barrier")
    e("s_cmp_lg_u32 s27, 0")
    e("s_cbranch_scc1 K5_END")
    e("v_mov_b32 v6, s43")
    e("v_mov_b32 v7, s40")
    e("s_mov_b64 exec, 1")
    e("buffer_atomic_add v6, v7, s[44:47], 0 offen sc1")
    e("s_waitcnt vmcnt(0)")
    e("s_branch K5_END")
    e.label("K5_SECOND")
    e("s_cmp_lg_u32 s27, 0")
    e("s_cbranch_scc1 K5_POLL_DONE")
    e("v_mov_b32 v7, s40")
    e.label("K5_POLL")
    e("buffer_load_dword v6, v7, s[44:47], 0 offen sc1")
    e("s_waitcnt vmcnt(0)")
    e.nop(1)
    e("v_readfirstlane_b32 s35, v6")
    e.nop(4)
    e("s_and_b32 s35, s35, s43")
    e("s_cmp_lg_u32 s35, 0")
    e("s_cbranch_scc1 K5_POLL_DONE")
    e("s_sleep 2")
    e("s_branch K5_POLL")
    e.label("K5_POLL_DONE")
    e("s_barrier")
    for q in range(16):
        e(f"s_add_u32 s33, s34, {q*1024}")
        e(f"buffer_load_dwordx4 v[{32+4*q}:{32+4*q+3}], v5, s[20:23], s33 offen sc1")
    e("v_and_b32 v3, 15, v1")
    e("v_lshrrev_b32 v4, 4, v1")
    e("s_lshl_b32 s3, s36, 6")
    e("v_add_u32 v3, s3, v3")
    e("v_lshlrev_b32 v3, 11, v3")
    e("s_lshl_b32 s3, s37, 7")
    e("v_lshl_add_u32 v3, v4, 3, v3")
    e("v_add_u32 v3, s3, v3")
    e("s_lshl_b32 s42, s5, 18")
    e("s_lshl_b32 s3, s6, 8")
    e("s_add_u32 s42, s42, s3")
    for i in range(4):
        e(f"s_add_u32 s{48+i}, s42, {i*16*2048}")
    for i in range(4):
        for j in range(4):
            r = 96 + (i * 4 + j) * 2
            e(f"buffer_load_dwordx2 v[{r}:{r+1}], v3, s[16:19], s{48+i} offen offset:{j*32}")
    e("s_waitcnt vmcnt(16)")
    for q in range(64):
        e(f"v_add_f32 v{ACC+q}, v{ACC+q}, v{32+q}")
    e("s_waitcnt vmcnt(0)")
    for i in range(4):
        for j in range(4):
            a_ = ACC + (i * 4 + j) * 4
            r = 96 + (i * 4 + j) * 2
            for hp in range(2):
                e(f"v_cvt_pk_bf16_f32 v6, v{a_+2*hp}, v{a_+2*hp+1}")
                e(f"v_lshlrev_b32 v7, 16, v6")
                e(f"v_and_b32 v6, 0xffff0000, v6")
                e(f"v_lshlrev_b32 v8, 16, v{r+hp}")
                e(f"v_and_b32 v9, 0xffff0000, v{r+hp}")
                e(f"v_add_f32 v7, v7, v8")
                e(f"v_add_f32 v6, v6, v9")
                e(f"v_cvt_pk_bf16_f32 v{r+hp}, v7, v6")
            e(f"buffer_store_dwordx2 v[{r}:{r+1}], v3, s[16:19], s{48+i} offen offset:{j*32}")
    e.label("K5_END")
    e("s_endpgm")

def add(stages, e, launches, kds, kd):
    launches.append("; @launch kernel=k5_kernel grid=(256,1,1) block=(256,1,1) lds=131072")
    gen_k5(e); kds.append(kd("k5_kernel", 192, 102))
```

```python
from emit import *
import fft_kernels as F

HH_OFF = 0x2000000
HH_BYTES = 2048 * 3584 * 2
WG_BYTES = 1024 * 3584 * 2
WD_BYTES = 3584 * 1024 * 2
PART_OFF = 0x3000000
PART_BYTES = 128 * 65536
FLAG_OFF = 0x4000000

def interleave(main, side, start=0, every=1):
    out = []
    si = 0
    for i, m in enumerate(main):
        out.append(m)
        if i >= start and (i - start) % every == 0 and si < len(side):
            out.extend(side[si]); si += 1
    while si < len(side):
        out.extend(side[si]); si += 1
    return out

def gelu_pair(e, g0, g1, u0, u1, out, tmp, sc1, sc0):
    t0, t1, t2, t3 = tmp
    e(f"v_cvt_pk_bf16_f32 v{t0}, v{g0}, v{g1}")
    e(f"v_cvt_pk_bf16_f32 v{t1}, v{u0}, v{u1}")
    e(f"v_lshlrev_b32 v{g0}, 16, v{t0}")
    e(f"v_and_b32 v{g1}, 0xffff0000, v{t0}")
    e(f"v_lshlrev_b32 v{u0}, 16, v{t1}")
    e(f"v_and_b32 v{u1}, 0xffff0000, v{t1}")
    e(f"v_mul_f32 v{t0}, v{g0}, v{g0}")
    e(f"v_mul_f32 v{t1}, v{g1}, v{g1}")
    e(f"v_fma_f32 v{t0}, v{t0}, s{sc1}, v{t2 if False else t0}") if False else None
    e(f"v_mov_b32 v{t2}, s{sc0}")
    e(f"v_fma_f32 v{t0}, v{t0}, s{sc1}, v{t2}")
    e(f"v_fma_f32 v{t1}, v{t1}, s{sc1}, v{t2}")
    e(f"v_mul_f32 v{t0}, v{t0}, v{g0}")
    e(f"v_mul_f32 v{t1}, v{t1}, v{g1}")
    e(f"v_exp_f32 v{t0}, v{t0}")
    e(f"v_exp_f32 v{t1}, v{t1}")
    e.nop(1)
    e(f"v_add_f32 v{t0}, 1.0, v{t0}")
    e(f"v_add_f32 v{t1}, 1.0, v{t1}")
    e(f"v_rcp_f32 v{t0}, v{t0}")
    e(f"v_rcp_f32 v{t1}, v{t1}")
    e.nop(1)
    e(f"v_mul_f32 v{g0}, v{g0}, v{t0}")
    e(f"v_mul_f32 v{g1}, v{g1}, v{t1}")
    e(f"v_cvt_pk_bf16_f32 v{t0}, v{g0}, v{g1}")
    e(f"v_lshlrev_b32 v{g0}, 16, v{t0}")
    e(f"v_and_b32 v{g1}, 0xffff0000, v{t0}")
    e(f"v_mul_f32 v{g0}, v{g0}, v{u0}")
    e(f"v_mul_f32 v{g1}, v{g1}, v{u1}")
    e(f"v_cvt_pk_bf16_f32 v{out}, v{g0}, v{g1}")

def gen_k4(e):
    F.kernel_header(e, "k4_kernel")
    BUF = 73728
    e("s_cmp_ge_u32 s2, 256")
    e("s_cbranch_scc1 K4_END")
    e("s_load_dwordx4 s[4:7], s[0:1], 32")
    e("s_load_dwordx2 s[28:29], s[0:1], 72")
    e("v_and_b32 v1, 63, v0")
    e("v_lshrrev_b32 v2, 6, v0")
    e.nop(1)
    e("v_readfirstlane_b32 s27, v2")
    e("s_waitcnt lgkmcnt(0)")
    e.srd(8, 28, F.LN2_BYTES, F.LN2_OFF)
    e.srd(12, 4, WG_BYTES)
    e.srd(16, 6, WG_BYTES)
    e.srd(20, 28, HH_BYTES, HH_OFF)
    e("s_and_b32 s3, s2, 7")
    e("s_lshr_b32 s4, s2, 3")
    e("s_and_b32 s5, s3, 1")
    e("s_lshl_b32 s5, s5, 3")
    e("s_and_b32 s6, s4, 7")
    e("s_add_u32 s5, s5, s6")
    e("s_lshr_b32 s6, s3, 1")
    e("s_lshl_b32 s6, s6, 2")
    e("s_lshr_b32 s7, s4, 3")
    e("s_add_u32 s6, s6, s7")
    e("s_lshr_b32 s36, s27, 1")
    e("s_and_b32 s37, s27, 1")
    e("s_lshl_b32 s24, s5, 18")
    e("s_lshl_b32 s3, s27, 16")
    e("s_add_u32 s24, s24, s3")
    e("s_mov_b32 s25, 0")
    e("s_lshl_b32 s30, s27, 12")
    e("s_mul_i32 s31, s27, 7168")
    e("s_add_u32 s32, s31, 45056")
    e("s_add_u32 s31, s31, 16384")
    e("v_lshrrev_b32 v3, 3, v1")
    e("v_and_b32 v4, 7, v1")
    e("v_xor_b32 v4, v4, v3")
    e("v_lshlrev_b32 v4, 4, v4")
    e("v_lshl_add_u32 v10, v3, 11, v4")
    e("s_mul_i32 s3, s27, 448")
    e("v_add_u32 v3, s3, v1")
    e("s_mul_i32 s3, s6, 448")
    e(f"s_mov_b32 s4, {(2**32 + 27)//28}")
    for ii in range(7):
        e(f"v_add_u32 v4, {64*ii}, v3")
        e("v_mul_hi_u32 v5, v4, s4")
        e("v_mul_u32_u24 v6, 28, v5")
        e("v_sub_u32 v6, v4, v6")
        e("v_lshrrev_b32 v7, 3, v5")
        e("v_and_b32 v7, 1, v7")
        e("v_lshlrev_b32 v7, 1, v7")
        e("v_xor_b32 v6, v6, v7")
        e("v_mul_u32_u24 v5, 7168, v5")
        e("v_lshl_add_u32 v5, v6, 4, v5")
        e(f"v_add_u32 v{11+ii}, s3, v5")
    e("v_and_b32 v3, 15, v1")
    e("v_lshrrev_b32 v4, 4, v1")
    e("v_and_b32 v5, 7, v1")
    e("s_lshl_b32 s3, s36, 13")
    for hh in range(2):
        e(f"v_add_u32 v6, {4*hh}, v4")
        e("v_xor_b32 v6, v6, v5")
        e("v_lshlrev_b32 v6, 4, v6")
        e("v_lshl_add_u32 v6, v3, 7, v6")
        e(f"v_add_u32 v{18+hh}, s3, v6")
        e(f"v_add_u32 v{20+hh}, {BUF}, v{18+hh}")
    e("v_lshrrev_b32 v5, 2, v3")
    e("v_lshl_add_u32 v5, v4, 3, v5")
    e("v_mul_u32_u24 v5, 448, v5")
    e("v_and_b32 v6, 3, v1")
    e("v_lshl_add_u32 v5, v6, 3, v5")
    e("s_mul_i32 s3, s37, 224")
    e("s_add_u32 s3, s3, 16384")
    e("v_add_u32 v5, s3, v5")
    e("v_and_b32 v6, 1, v4")
    e("v_lshlrev_b32 v6, 5, v6")
    e("v_add_u32 v22, v5, v6")
    e("v_sub_u32 v23, v5, v6")
    e(f"v_add_u32 v24, {BUF}, v22")
    e(f"v_add_u32 v25, {BUF}, v23")
    e("s_cmp_eq_u32 s37, 1")
    e("s_cbranch_scc0 K4_NOSWAP")
    for a_, b_ in ((22, 23), (24, 25)):
        e(f"v_mov_b32 v6, v{a_}")
        e(f"v_mov_b32 v{a_}, v{b_}")
        e(f"v_mov_b32 v{b_}, v6")
    e.label("K4_NOSWAP")

    SETS = [dict(A=32, B=48), dict(A=104, B=120)]

    def dma(buf):
        g = []
        o = buf * BUF
        for ii in range(4):
            g.append([f"s_add_u32 m0, s30, {o + ii*1024}", f"s_add_u32 s33, s24, {ii*16384}",
                      f"buffer_load_dwordx4 v10, s[8:11], s33 offen lds"])
        for ii in range(7):
            g.append([f"s_add_u32 m0, s31, {o + ii*1024}", "s_nop 0",
                      f"buffer_load_dwordx4 v{11+ii}, s[12:15], s25 offen lds"])
            g.append([f"s_add_u32 m0, s32, {o + ii*1024}", "s_nop 0",
                      f"buffer_load_dwordx4 v{11+ii}, s[16:19], s25 offen lds"])
        return g
    def advance():
        return ["s_add_u32 s24, s24, 128", f"s_add_u32 s25, s25, {64*7168}"]
    def reads(buf, hh, st):
        g = []
        S = SETS[st]
        for i in range(4):
            g.append([f"ds_read_b128 v[{S['A']+4*i}:{S['A']+4*i+3}], v{18+2*buf+hh} offset:{i*2048}"])
        for j in range(14):
            sub, jj = j // 7, j % 7
            for p in range(2):
                off = sub * 28672 + hh * 14336 + p * 1792 + jj * 32
                r = S['B'] + 4 * j + 2 * p
                g.append([f"ds_read_b64_tr_b16 v[{r}:{r+1}], v{22+2*buf+(jj&1)} offset:{off}"])
        return g
    def mfmas(st):
        S = SETS[st]
        m = []
        for j in range(14):
            for i in range(4):
                acc = (i * 14 + j) * 4
                m.append(f"v_mfma_f32_16x16x32_bf16 a[{acc}:{acc+3}], v[{S['B']+4*j}:{S['B']+4*j+3}], v[{S['A']+4*i}:{S['A']+4*i+3}], a[{acc}:{acc+3}]")
        return m

    for grp in dma(0):
        for x in grp: e(x)
    for x in advance(): e(x)
    for grp in dma(1):
        for x in grp: e(x)
    for x in advance(): e(x)
    for i in range(224):
        e(f"v_accvgpr_write_b32 a{i}, 0")
    e("s_waitcnt vmcnt(18)")
    e("s_barrier")
    for grp in reads(0, 0, 0):
        for x in grp: e(x)

    def tile(buf, do_dma, do_next):
        e("s_waitcnt lgkmcnt(0)")
        for x in interleave(mfmas(0), reads(buf, 1, 1), 0, 1): e(x)
        e("s_waitcnt lgkmcnt(0)")
        e("s_waitcnt vmcnt(0)")
        e("s_barrier")
        side = []
        if do_next: side += reads(buf ^ 1, 0, 0)
        if do_dma:
            d = dma(buf)
            merged = []
            rs = side;
            while rs or d:
                if rs: merged.append(rs.pop(0))
                if d: merged.append(d.pop(0))
            side = merged + [advance()]
        for x in interleave(mfmas(1), side, 0, 1): e(x)

    e("s_mov_b32 s26, 0")
    e.label("K4_LOOP")
    tile(0, True, True)
    tile(1, True, True)
    e("s_add_u32 s26, s26, 1")
    e("s_cmp_lt_u32 s26, 7")
    e("s_cbranch_scc1 K4_LOOP")
    tile(0, False, True)
    tile(1, False, False)
    e.nop(16)
    e(f"s_mov_b32 s40, {f32hex(-2*1.4426950408889634*0.7978845608028654*0.044715)}")
    e(f"s_mov_b32 s41, {f32hex(-2*1.4426950408889634*0.7978845608028654)}")
    e("v_and_b32 v3, 15, v1")
    e("v_lshrrev_b32 v4, 4, v1")
    e("s_lshl_b32 s3, s36, 6")
    e("v_add_u32 v3, s3, v3")
    e("v_mul_u32_u24 v3, 7168, v3")
    e("s_mul_i32 s3, s37, 224")
    e("v_lshl_add_u32 v3, v4, 3, v3")
    e("v_add_u32 v3, s3, v3")
    e("s_mul_i32 s42, s5, 128*7168")
    e("s_mul_i32 s3, s6, 448")
    e("s_add_u32 s42, s42, s3")
    for i in range(4):
        for j in range(7):
            ag = (i * 14 + j) * 4
            au = (i * 14 + 7 + j) * 4
            base = 32 + ((i * 7 + j) % 4) * 16
            for v in range(4):
                e(f"v_accvgpr_read_b32 v{base+v}, a{ag+v}")
                e(f"v_accvgpr_read_b32 v{base+4+v}, a{au+v}")
            gelu_pair(e, base, base+1, base+4, base+5, base+12, (base+8, base+9, base+10, base+11), 40, 41)
            gelu_pair(e, base+2, base+3, base+6, base+7, base+13, (base+8, base+9, base+10, base+11), 40, 41)
            e(f"buffer_store_dwordx2 v[{base+12}:{base+13}], v3, s[20:23], s42 offen offset:{j*32}")
        e(f"s_add_u32 s42, s42, {16*7168}")
    e.label("K4_END")
    e("s_endpgm")

def add(stages, e, launches, kds, kd):
    if 'k4' in stages:
        launches.append("; @launch kernel=k4_kernel grid=(256,1,1) block=(256,1,1) lds=147456")
        gen_k4(e); kds.append(kd("k4_kernel", 480, 102, 256))
    if 'k5' in stages:
        import gemm2
        gemm2.add(stages, e, launches, kds, kd)
```

```python
import sys
sys.path.insert(0, 'gen')
from emit import *
import fft_kernels as F

HEADER = open('sequential_preLN__spectral_gfnet__glu_gated_geglu__prompt.s.ref').read().split('; Override launch geometry')[0]

def kd(name, vgpr, sgpr=102, accum=None):
    if accum is None:
        accum = (vgpr + 3) // 4 * 4
    return f""".amdhsa_kernel {name}
  .amdhsa_next_free_vgpr {vgpr}
  .amdhsa_next_free_sgpr {sgpr}
  .amdhsa_accum_offset {accum}
  .amdhsa_group_segment_fixed_size 0
  .amdhsa_kernarg_size 80
  .amdhsa_user_sgpr_count 2
  .amdhsa_user_sgpr_kernarg_segment_ptr 1
  .amdhsa_system_sgpr_workgroup_id_x 1
  .amdhsa_float_denorm_mode_32 3
.end_amdhsa_kernel
"""

def build(stages):
    e = E()
    launches = []
    kds = []
    if 'k1' in stages:
        launches.append("; @launch kernel=k1_kernel grid=(256,1,1) block=(512,1,1) lds=33024")
        F.gen_k1(e); kds.append(kd("k1_kernel", 128))
    if 'k2' in stages:
        launches.append("; @launch kernel=k2_kernel grid=(513,1,1) block=(256,1,1) lds=32768")
        F.gen_k2(e); kds.append(kd("k2_kernel", 160))
    if 'k3' in stages:
        launches.append("; @launch kernel=k3_kernel grid=(256,1,1) block=(512,1,1) lds=33024")
        F.gen_k3(e); kds.append(kd("k3_kernel", 128))
    try:
        import gemm_kernels as G
        G.add(stages, e, launches, kds, kd)
    except ImportError:
        pass
    out = HEADER + "\n".join(launches) + "\n" + '.amdgcn_target "amdgcn-amd-amdhsa--gfx950"\n.text\n' + e.text()
    out += '.section .rodata,"a"\n.p2align 6\n' + "".join(kds)
    return out

if __name__ == "__main__":
    stages = sys.argv[2:] if len(sys.argv) > 2 else ['k1', 'k2', 'k3', 'k4', 'k5']
    open(sys.argv[1], 'w').write(build(stages))
```

```python
from trace import trace_begin, trace_end
from emit import *
from pk import *
import fft_kernels as F
from fft_kernels import XF_OFF, XF_BYTES, LN2_OFF, LN2_BYTES, X_BYTES, W_BYTES, kernel_header, stamp, stamp_flush

WT_OFF = 0x900000
WT_BYTES = 513 * 2048 * 4
A = [20 + 2*i for i in range(8)]
B = [36 + 2*i for i in range(8)]
T = [52 + 2*i for i in range(8)]
PQ = [68, 70]
C = [72, 74, 76, 78]
TW = [80 + 2*i for i in range(7)]

def pass8(e, vt, vR, rstride, tag, barrier, nthreads_log):
    e(f"v_lshlrev_b32 v5, s20, 1")
    e(f"v_add_u32 v5, -1, v5")
    e(f"v_and_b32 v6, v{vt}, v5")
    e(f"v_lshrrev_b32 v7, s20, v{vt}")
    e(f"s_add_u32 s21, s20, 3")
    e(f"v_lshlrev_b32 v7, s21, v7")
    e(f"v_add_u32 v7, v7, v6")
    e(f"v_lshl_add_u32 v7, v7, 3, v4")
    e(f"v_cvt_f32_u32 v6, v6")
    e(f"v_mul_f32 v6, s22, v6")
    ptwiddles(e, 6, range(1, 8), TW, 98)
    e(f"s_lshl_b32 s23, 8, s20")
    for r in range(1, 8):
        pcmul(e, A[r], A[r], TW[r-1], 94)
    pradix8(e, A, B, T, PQ, C, 16)
    for r in range(8):
        e(f"ds_write_b64 v7, {P(B[r])}")
        if r < 7: e(f"v_add_u32 v7, s23, v7")
    if barrier:
        e("s_waitcnt lgkmcnt(0)")
        e("s_barrier")

def ln16(e, xs_pairs, seps):
    vm, vv, vt, vr = 94, 96, 98, 99
    e(f"v_pk_add_f32 {P(vm)}, {P(xs_pairs[0])}, {P(xs_pairs[1])}")
    for p in xs_pairs[2:]:
        e(f"v_pk_add_f32 {P(vm)}, {P(vm)}, {P(p)}")
    e(f"v_add_f32 v{vm}, v{vm}, v{vm+1}")
    e.wave_sum(vm, vt, 24)
    e(f"v_mul_f32 v{vm}, {f32hex(1.0/1024)}, v{vm}")
    e(f"v_mov_b32 v{vm+1}, v{vm}")
    for i, p in enumerate(xs_pairs):
        e(f"v_pk_add_f32 {P(vt)}, {P(p)}, {P(vm)} neg_lo:[0,1] neg_hi:[0,1]")
        if i == 0: e(f"v_pk_mul_f32 {P(vv)}, {P(vt)}, {P(vt)}")
        else: e(f"v_pk_fma_f32 {P(vv)}, {P(vt)}, {P(vt)}, {P(vv)}")
    e(f"v_add_f32 v{vv}, v{vv}, v{vv+1}")
    e.wave_sum(vv, vt, 24)
    e(f"v_mul_f32 v{vv}, {f32hex(1.0/1024)}, v{vv}")
    e.bf16_round(vm)
    e(f"v_mov_b32 v{vm+1}, v{vm}")
    e.bf16_round(vv)
    e(f"v_add_f32 v{vv}, s{seps}, v{vv}")
    e.bf16_round(vv)
    e(f"v_sqrt_f32 v{vv}, v{vv}")
    e.nop(1)
    e.bf16_round(vv)
    e(f"v_rcp_f32 v{vr}, v{vv}")
    e(f"v_mov_b32 v{vv+1}, v{vv}")
    e(f"v_mov_b32 v{vt}, v{vr}")
    for p in xs_pairs:
        e(f"v_pk_add_f32 {P(p)}, {P(p)}, {P(vm)} neg_lo:[0,1] neg_hi:[0,1]")
        e(f"v_cvt_pk_bf16_f32 v{p}, v{p}, v{p+1}")
        e(f"v_and_b32 v{p+1}, 0xffff0000, v{p}")
        e(f"v_lshlrev_b32 v{p}, 16, v{p}")
        e(f"v_pk_mul_f32 {P(100)}, {P(p)}, {P(vt)}")
        e(f"v_pk_fma_f32 {P(102)}, {P(100)}, {P(vv)}, {P(p)} neg_lo:[1,0,0] neg_hi:[1,0,0]")
        e(f"v_pk_fma_f32 {P(p)}, {P(102)}, {P(vt)}, {P(100)}")

def fft512_loop(e, tag):
    e("s_mov_b32 s20, 0")
    e(f"s_mov_b32 s22, {f32hex(-1.0/8)}")
    e.label(f"{tag}_PASS")
    pass8(e, 1, None, 512, tag, False, 6)
    e("s_cmp_eq_u32 s20, 6")
    e(f"s_cbranch_scc1 {tag}_PASSDONE")
    for r in range(8):
        e(f"ds_read_b64 {P(A[r])}, v3 offset:{512*r}")
    e("s_add_u32 s20, s20, 3")
    e(f"v_mul_f32 v6, {f32hex(0.125)}, v6") if False else None
    e("s_sub_u32 s22, s22, 0x01800000")
    e("s_waitcnt lgkmcnt(0)")
    e(f"s_branch {tag}_PASS")
    e.label(f"{tag}_PASSDONE")

def gen_k1(e):
    kernel_header(e, "k1_kernel")
    trace_begin(e)
    e("s_cmp_ge_u32 s2, 256")
    e("s_cbranch_scc1 K1_WT")
    e("s_load_dwordx2 s[4:5], s[0:1], 0")
    e("s_load_dwordx2 s[6:7], s[0:1], 72")
    e("v_and_b32 v1, 63, v0")
    e("v_lshrrev_b32 v2, 6, v0")
    e("s_lshl_b32 s18, s2, 14")
    e("v_lshlrev_b32 v3, 11, v2")
    e("v_lshl_add_u32 v3, v1, 2, v3")
    e("s_waitcnt lgkmcnt(0)")
    e.srd(8, 4, X_BYTES)
    for r in range(8):
        e(f"buffer_load_dword v{10+r}, v3, s[8:11], s18 offen offset:{256*r}")
    e.srd(12, 6, XF_BYTES, XF_OFF)
    e(f"s_mov_b32 s16, {SQH}")
    e(f"s_mov_b32 s17, {SQH}")
    e(f"s_mov_b32 s19, {f32hex(1e-5)}")
    e("v_mul_u32_u24 v4, 4128, v2")
    e("v_lshl_add_u32 v3, v1, 3, v4")
    e("s_waitcnt vmcnt(0)")
    for r in range(8):
        e(f"v_lshlrev_b32 v{A[r]}, 16, v{10+r}")
        e(f"v_and_b32 v{A[r]+1}, 0xffff0000, v{10+r}")
    ln16(e, A, 19)
    for p in A:
        e(f"v_cvt_pk_bf16_f32 v{p}, v{p}, v{p+1}")
        e(f"v_and_b32 v{p+1}, 0xffff0000, v{p}")
        e(f"v_lshlrev_b32 v{p}, 16, v{p}")
    fft512_loop(e, "K1")
    e("s_waitcnt lgkmcnt(0)")
    e("s_barrier")
    e("v_and_b32 v2, 7, v0")
    e("v_lshrrev_b32 v6, 3, v0")
    e("v_mul_u32_u24 v4, 4128, v2")
    e("s_lshl_b32 s18, s2, 6")
    e("v_lshlrev_b32 v5, 3, v2")
    e("v_add_u32 v5, s18, v5")
    e("s_mov_b32 s20, 0")
    e.label("K1_POST")
    e("v_sub_u32 v7, 512, v6")
    e("v_and_b32 v9, 511, v7")
    e("v_lshl_add_u32 v8, v6, 3, v4")
    e("v_lshl_add_u32 v9, v9, 3, v4")
    e("ds_read_b64 v[20:21], v8")
    e("ds_read_b64 v[22:23], v9")
    e("v_cvt_f32_u32 v60, v6")
    e(f"v_mul_f32 v60, {f32hex(-1.0/1024)}, v60")
    e("v_cos_f32 v62, v60")
    e("v_sin_f32 v63, v60")
    e("v_lshl_add_u32 v8, v6, 14, v5")
    e("v_lshl_add_u32 v9, v7, 14, v5")
    e("s_waitcnt lgkmcnt(0)")
    e("v_pk_add_f32 v[50:51], v[20:21], v[22:23] neg_hi:[0,1]")
    e("v_pk_add_f32 v[52:53], v[20:21], v[22:23] op_sel:[1,1] op_sel_hi:[0,0] neg_hi:[1,0]")
    pcmul(e, 54, 52, 62, 56)
    e("v_pk_add_f32 v[56:57], v[50:51], v[54:55]")
    e("v_pk_add_f32 v[58:59], v[50:51], v[54:55] neg_lo:[0,1] neg_hi:[1,0]")
    e("buffer_store_dwordx2 v[56:57], v8, s[12:15], 0 offen")
    e("buffer_store_dwordx2 v[58:59], v9, s[12:15], 0 offen")
    e("v_add_u32 v6, 64, v6")
    e("s_add_u32 s20, s20, 1")
    e("s_cmp_lt_u32 s20, 4")
    e("s_cbranch_scc1 K1_POST")
    e("s_cmp_eq_u32 s20, 5")
    e("s_cbranch_scc1 K1_END")
    e("v_cmp_gt_u32 vcc, 8, v0")
    e("s_and_saveexec_b64 s[28:29], vcc")
    e("s_cbranch_execnz K1_POST")
    e.label("K1_END")
    trace_end(e, 0, "K1")
    e("s_endpgm")
    e.label("K1_WT")
    e("s_cmp_ge_u32 s2, 400")
    e("s_cbranch_scc1 K1_END")
    e("s_load_dwordx4 s[4:7], s[0:1], 8")
    e("s_load_dwordx2 s[28:29], s[0:1], 72")
    e("s_sub_u32 s3, s2, 256")
    e("s_lshr_b32 s18, s3, 4")
    e("s_and_b32 s19, s3, 15")
    e("v_and_b32 v1, 63, v0")
    e("v_lshrrev_b32 v2, 6, v0")
    e("s_lshl_b32 s20, s18, 7")
    e("s_mul_i32 s21, s19, 128*1026")
    e("s_add_u32 s20, s20, s21")
    e("v_mul_u32_u24 v3, 16*1026, v2")
    e("v_lshl_add_u32 v3, v1, 1, v3")
    e("s_waitcnt lgkmcnt(0)")
    e.srd(8, 4, W_BYTES)
    e.srd(32, 6, W_BYTES)
    e.srd(12, 28, WT_BYTES, WT_OFF)
    for r in range(16):
        e(f"s_add_u32 s22, s20, {1026*r}")
        e(f"buffer_load_ushort v{20+r}, v3, s[8:11], s22 offen")
        e(f"buffer_load_ushort v{40+r}, v3, s[32:35], s22 offen")
    e("v_mul_u32_u24 v4, 520, v1")
    e("v_lshl_add_u32 v4, v2, 6, v4")
    e("s_waitcnt vmcnt(0)")
    for r in range(16):
        e(f"v_lshl_or_b32 v{20+r}, v{40+r}, 16, v{20+r}")
        e(f"ds_write_b32 v4, v{20+r} offset:{4*r}")
    e("s_waitcnt lgkmcnt(0)")
    e("s_barrier")
    e("v_mul_u32_u24 v4, 8*520, v2")
    e("v_lshl_add_u32 v4, v1, 3, v4")
    e("v_lshlrev_b32 v5, 16, v2")
    e("v_lshl_add_u32 v5, v1, 3, v5")
    e("s_lshl_b32 s20, s18, 19")
    e("s_lshl_b32 s21, s19, 9")
    e("s_add_u32 s20, s20, s21")
    for r in range(8):
        e(f"ds_read_b64 v[{20+2*r}:{21+2*r}], v4 offset:{520*r}")
    e("s_waitcnt lgkmcnt(0)")
    for r in range(8):
        e(f"s_add_u32 s22, s20, {8192*r}")
        e(f"buffer_store_dwordx2 v[{20+2*r}:{21+2*r}], v5, s[12:15], s22 offen")
    e("s_endpgm")

def gen_k2(e):
    kernel_header(e, "k2_kernel")
    trace_begin(e)
    e("s_cmp_ge_u32 s2, 513")
    e("s_cbranch_scc1 K2_END")
    stamp(e, 0)
    if 'twice' in F.EXP:
        e("s_mov_b32 s89, 0")
        e.label("K2_AGAIN")
    e("s_load_dwordx2 s[28:29], s[0:1], 72")
    e("v_lshlrev_b32 v1, 3, v0")
    e("s_lshl_b32 s30, s2, 14")
    e("v_lshlrev_b32 v2, 2, v0")
    e("s_lshl_b32 s18, s2, 13")
    e("s_waitcnt lgkmcnt(0)")
    e.srd(12, 28, XF_BYTES, XF_OFF)
    for q in range(8):
        e(f"s_add_u32 s{40+q}, s30, {2048*q}")
        e(f"buffer_load_dwordx2 {P(A[q])}, v1, s[12:15], s{40+q} offen")
    e.srd(8, 28, WT_BYTES, WT_OFF)
    WV = [104 + 2*q for q in range(8)]
    for q in range(8):
        e(f"buffer_load_dword v{WV[q]}, v2, s[8:11], s18 offen offset:{1024*q if q < 4 else 0}") if q < 4 else (
            e(f"s_add_u32 s31, s18, {1024*q}"), e(f"buffer_load_dword v{WV[q]}, v2, s[8:11], s31 offen"))
    e(f"s_mov_b32 s16, {SQH}")
    e(f"s_mov_b32 s17, {SQH}")
    e(f"s_mov_b32 s36, {f32hex(2.0**-22)}")
    e(f"s_mov_b32 s37, {f32hex(-2.0**-22)}")
    e("s_mov_b32 s38, 0")
    e("v_mov_b32 v4, 0")
    e("v_mov_b32 v3, v1")
    e("s_waitcnt vmcnt(8)")
    stamp(e, 1)
    e.label("K2_FFT")
    e("s_mov_b32 s20, 0")
    e(f"s_mov_b32 s22, {f32hex(-1.0/8)}")
    e.label("K2_PASS")
    pass8(e, 0, None, 2048, "K2", True, 8)
    for r in range(8):
        e(f"ds_read_b64 {P(A[r])}, v3 offset:{2048*r}")
    e("v_xor_b32 v3, 0x4000, v3")
    e("v_xor_b32 v4, 0x4000, v4")
    e("s_add_u32 s20, s20, 3")
    e("s_sub_u32 s22, s22, 0x01800000")
    e("s_cmp_lt_u32 s20, 9")
    e("s_waitcnt lgkmcnt(0)")
    e("s_cbranch_scc1 K2_PASS")
    e("v_cvt_f32_u32 v6, v0")
    e(f"v_mul_f32 v6, {f32hex(-1.0/2048)}, v6")
    ptwiddles(e, 6, range(1, 4), TW[0:3], 98)
    e(f"v_add_f32 v6, {f32hex(-0.125)}, v6")
    ptwiddles(e, 6, range(1, 4), TW[3:6], 98)
    for h in range(2):
        for r in range(1, 4):
            pcmul(e, A[2*r+h], A[2*r+h], TW[3*h+r-1], 94)
        pradix4(e, [A[h], A[2+h], A[4+h], A[6+h]], [B[h], B[2+h], B[4+h], B[6+h]], C)
    e("s_cmp_eq_u32 s38, 1")
    e("s_cbranch_scc1 K2_STORE")
    e("s_waitcnt vmcnt(0)")
    for q in range(8):
        e(f"v_and_b32 v{WV[q]+1}, 0xffff0000, v{WV[q]}")
        e(f"v_lshlrev_b32 v{WV[q]}, 16, v{WV[q]}")
        pcmul(e, B[q], B[q], WV[q], 94)
        e(f"v_pk_mul_f32 {P(A[q])}, {P(B[q])}, s[36:37]")
    e("s_mov_b32 s38, 1")
    e("s_branch K2_FFT")
    e.label("K2_STORE")
    for q in range(8):
        e(f"buffer_store_dwordx2 {P(B[q])}, v1, s[12:15], s{40+q} offen")
    if 'twice' in F.EXP:
        e("s_cmp_eq_u32 s89, 1")
        e("s_cbranch_scc1 K2_FIN")
        stamp(e, 2)
        e("s_mov_b32 s89, 1")
        e("s_waitcnt vmcnt(0)")
        e("s_barrier")
        e("s_branch K2_AGAIN")
        e.label("K2_FIN")
        stamp(e, 3)
        stamp_flush(e, 4, "K2")
    else:
        stamp(e, 2)
        stamp_flush(e, 3, "K2")
    e.label("K2_END")
    trace_end(e, 1, "K2")
    e("s_endpgm")

def gen_k3(e):
    kernel_header(e, "k3_kernel")
    trace_begin(e)
    e("s_cmp_ge_u32 s2, 256")
    e("s_cbranch_scc1 K3_END")
    e("s_load_dwordx2 s[4:5], s[0:1], 0")
    e("s_load_dwordx2 s[6:7], s[0:1], 72")
    e("s_load_dwordx2 s[28:29], s[0:1], 56")
    e("v_and_b32 v1, 63, v0")
    e("v_lshrrev_b32 v2, 6, v0")
    e("v_and_b32 v10, 7, v0")
    e("v_lshrrev_b32 v6, 3, v0")
    e("v_mul_u32_u24 v12, 4128, v10")
    e("s_lshl_b32 s18, s2, 6")
    e("v_lshlrev_b32 v13, 3, v10")
    e("v_add_u32 v13, s18, v13")
    e("s_waitcnt lgkmcnt(0)")
    e.srd(12, 6, XF_BYTES, XF_OFF)
    for i in range(5):
        e(f"v_add_u32 v7, {64*i}, v6")
        if i == 4: e("v_min_u32 v7, 256, v7")
        e("v_sub_u32 v8, 512, v7")
        e("v_lshl_add_u32 v7, v7, 14, v13")
        e("v_lshl_add_u32 v8, v8, 14, v13")
        e(f"buffer_load_dwordx2 v[{104+4*i}:{105+4*i}], v7, s[12:15], 0 offen")
        e(f"buffer_load_dwordx2 v[{106+4*i}:{107+4*i}], v8, s[12:15], 0 offen")
    e.srd(8, 4, X_BYTES)
    e("s_lshl_b32 s31, s2, 14")
    e("v_lshlrev_b32 v15, 11, v2")
    e("v_lshl_add_u32 v15, v1, 2, v15")
    for r in range(8):
        e(f"buffer_load_dword v{124+r}, v15, s[8:11], s31 offen offset:{256*r}")
    e.srd(32, 28, X_BYTES)
    e.srd(36, 6, LN2_BYTES, LN2_OFF)
    e(f"s_mov_b32 s16, {SQH}")
    e(f"s_mov_b32 s17, {SQH}")
    e(f"s_mov_b32 s19, {f32hex(1e-5)}")
    e("v_cmp_eq_u32 vcc, 0, v6")
    e("v_mov_b32 v60, 0")
    e("s_waitcnt vmcnt(8)")
    e("v_cndmask_b32 v105, v105, v60, vcc")
    e("v_cndmask_b32 v107, v107, v60, vcc")
    for i in range(5):
        y1, y2 = 104 + 4*i, 106 + 4*i
        if i == 4:
            e("v_cmp_gt_u32 vcc, 8, v0")
            e("s_and_saveexec_b64 s[24:25], vcc")
            e("s_cbranch_execz K3_SKIP")
        e(f"v_add_u32 v7, {64*i}, v6")
        e("v_cvt_f32_u32 v60, v7")
        e(f"v_mul_f32 v60, {f32hex(-1.0/1024)}, v60")
        e("v_cos_f32 v62, v60")
        e("v_sin_f32 v63, v60")
        e(f"v_pk_add_f32 v[50:51], {P(y1)}, {P(y2)} neg_hi:[0,1]")
        e(f"v_pk_add_f32 v[52:53], {P(y1)}, {P(y2)} neg_lo:[0,1]")
        pcmul(e, 54, 52, 62, 56)
        padd_rot(e, 56, 50, 54, -1)
        e("v_pk_add_f32 v[58:59], v[50:51], v[54:55] op_sel:[0,1] op_sel_hi:[1,0] neg_lo:[0,1] neg_hi:[1,1]")
        e("v_sub_u32 v8, 512, v7")
        e("v_and_b32 v8, 511, v8")
        e("v_lshl_add_u32 v7, v7, 3, v12")
        e("v_lshl_add_u32 v8, v8, 3, v12")
        e("ds_write_b64 v7, v[56:57]")
        e("ds_write_b64 v8, v[58:59]")
    e.label("K3_SKIP")
    e("s_mov_b64 exec, -1")
    e("v_mul_u32_u24 v4, 4128, v2")
    e("v_lshl_add_u32 v3, v1, 3, v4")
    e("s_waitcnt lgkmcnt(0)")
    e("s_barrier")
    for r in range(8):
        e(f"ds_read_b64 {P(A[r])}, v3 offset:{512*r}")
    e("s_waitcnt lgkmcnt(0)")
    fft512_loop(e, "K3")
    e("s_waitcnt vmcnt(0)")
    for r in range(8):
        e(f"v_cvt_pk_bf16_f32 v{B[r]}, v{B[r]}, -v{B[r]+1}")
        e(f"v_and_b32 v{B[r]+1}, 0xffff0000, v{B[r]}")
        e(f"v_lshlrev_b32 v{B[r]}, 16, v{B[r]}")
        e(f"v_lshlrev_b32 v94, 16, v{124+r}")
        e(f"v_and_b32 v95, 0xffff0000, v{124+r}")
        e(f"v_pk_add_f32 {P(B[r])}, {P(B[r])}, v[94:95]")
        e(f"v_cvt_pk_bf16_f32 v{104+r}, v{B[r]}, v{B[r]+1}")
        e(f"buffer_store_dword v{104+r}, v15, s[32:35], s31 offen offset:{256*r}")
        e(f"v_lshlrev_b32 v{B[r]}, 16, v{104+r}")
        e(f"v_and_b32 v{B[r]+1}, 0xffff0000, v{104+r}")
    ln16(e, B, 19)
    for r in range(8):
        e(f"v_cvt_pk_bf16_f32 v{20+r}, v{B[r]}, v{B[r]+1}")
        e(f"buffer_store_dword v{20+r}, v15, s[36:39], s31 offen offset:{256*r}")
    e.label("K3_END")
    trace_end(e, 2, "K3")
    e("s_endpgm")
```

```python
from emit import *
import os
EXP=os.environ.get('EXP','')
def stamp(e, i):
    if 'stamp' not in EXP: return
    e(f"s_memrealtime s[{70+2*i}:{71+2*i}]")
    e("s_waitcnt lgkmcnt(0)")
def stamp_flush(e, n, tag):
    if 'stamp' not in EXP: return
    e("s_load_dwordx2 s[90:91], s[0:1], 64")
    e("s_waitcnt lgkmcnt(0)")
    e.srd(92, 90, 256)
    e("s_cmp_lg_u32 s2, 37")
    e(f"s_cbranch_scc1 {tag}_NOSTAMP")
    e("v_mov_b32 v120, 0")
    for i in range(n):
        e(f"v_mov_b32 v121, s{70+2*i}")
        e(f"buffer_store_dword v121, v120, s[92:95], 0 offen offset:{4*i}")
    e.label(f"{tag}_NOSTAMP")

XF_OFF = 0
XF_BYTES = 513 * 2048 * 8
LN2_OFF = 0x1000000
LN2_BYTES = 2048 * 1024 * 2
X_BYTES = 2048 * 1024 * 2
W_BYTES = 2048 * 513 * 2

def cpx(base, n):
    return [(base + 2 * i, base + 2 * i + 1) for i in range(n)]

def kernel_header(e, name):
    e.raw(f".globl {name}")
    e.raw(".p2align 8")
    e.raw(f".type {name},@function")
    e.label(name)

def layernorm16(e, xs, vm, vv, vt, vr, vq, seps):
    e(f"v_add_f32 v{vm}, v{xs[0]}, v{xs[1]}")
    for i in range(2, 16):
        e(f"v_add_f32 v{vm}, v{vm}, v{xs[i]}")
    e.wave_sum(vm, vt, 20)
    e(f"v_mul_f32 v{vm}, {f32hex(1.0/1024)}, v{vm}")
    e(f"v_sub_f32 v{vt}, v{xs[0]}, v{vm}")
    e(f"v_mul_f32 v{vv}, v{vt}, v{vt}")
    for i in range(1, 16):
        e(f"v_sub_f32 v{vt}, v{xs[i]}, v{vm}")
        e(f"v_fmac_f32 v{vv}, v{vt}, v{vt}")
    e.wave_sum(vv, vt, 20)
    e(f"v_mul_f32 v{vv}, {f32hex(1.0/1024)}, v{vv}")
    e.bf16_round(vm)
    e.bf16_round(vv)
    e(f"v_add_f32 v{vv}, s{seps}, v{vv}")
    e.bf16_round(vv)
    e(f"v_sqrt_f32 v{vv}, v{vv}")
    e.nop(1)
    e.bf16_round(vv)
    e(f"v_rcp_f32 v{vr}, v{vv}")
    e.nop(1)
    for x in xs:
        e(f"v_sub_f32 v{x}, v{x}, v{vm}")
        e.bf16_round(x)
        e(f"v_mul_f32 v{vq}, v{x}, v{vr}")
        e(f"v_fma_f32 v{vt}, -v{vq}, v{vv}, v{x}")
        e(f"v_fma_f32 v{x}, v{vt}, v{vr}, v{vq}")
        e.bf16_round(x)

def gen_k1(e):
    name = "k1_kernel"
    kernel_header(e, name)
    e("s_cmp_ge_u32 s2, 256")
    e("s_cbranch_scc1 K1_END")
    e("s_load_dwordx2 s[4:5], s[0:1], 0")
    e("s_load_dwordx2 s[6:7], s[0:1], 72")
    e("v_and_b32 v1, 63, v0")
    e("v_lshrrev_b32 v2, 6, v0")
    e("s_waitcnt lgkmcnt(0)")
    e.srd(8, 4, X_BYTES)
    e.srd(12, 6, XF_BYTES, XF_OFF)
    e(f"s_mov_b32 s16, {SQH}")
    e(f"s_mov_b32 s17, {f32hex(1e-5)}")
    e("s_lshl_b32 s18, s2, 14")
    e("v_lshlrev_b32 v3, 11, v2")
    e("v_lshl_add_u32 v3, v1, 2, v3")
    for r in range(8):
        e(f"buffer_load_dword v{10+r}, v3, s[8:11], s18 offen offset:{256*r}")
    a = cpx(20, 8); b = cpx(36, 8); t = cpx(52, 8); pq = cpx(68, 2); c = cpx(72, 4); tw = cpx(80, 7)
    e("v_mul_u32_u24 v4, 4128, v2")
    e("v_lshl_add_u32 v5, v1, 6, v4")
    e("v_lshl_add_u32 v6, v1, 3, v4")
    e("v_lshrrev_b32 v7, 3, v1")
    e("v_lshlrev_b32 v7, 9, v7")
    e("v_and_b32 v8, 7, v1")
    e("v_lshl_add_u32 v7, v8, 3, v7")
    e("v_add_u32 v7, v7, v4")
    e("s_waitcnt vmcnt(0)")
    for r in range(8):
        e(f"v_lshlrev_b32 v{a[r][0]}, 16, v{10+r}")
        e(f"v_and_b32 v{a[r][1]}, 0xffff0000, v{10+r}")
    xs = [x for p in a for x in p]
    layernorm16(e, xs, 94, 95, 96, 97, 98, 17)
    radix8(e, -1, a, b, t, pq, c, 16)
    for i in range(4):
        e(f"ds_write_b128 v5, v[{b[2*i][0]}:{b[2*i][0]+3}] offset:{16*i}")
    for r in range(8):
        e(f"ds_read_b64 v[{a[r][0]}:{a[r][1]}], v6 offset:{512*r}")
    e("v_cvt_f32_u32 v99, v8")
    e(f"v_mul_f32 v99, {f32hex(1.0/64)}, v99")
    twiddles(e, 99, range(1, 8), tw, 98)
    e("s_waitcnt lgkmcnt(0)")
    for r in range(1, 8):
        cmul_tw(e, a[r], a[r], tw[r-1], False, (94, 95))
    radix8(e, -1, a, b, t, pq, c, 16)
    for r in range(8):
        e(f"ds_write_b64 v7, v[{b[r][0]}:{b[r][1]}] offset:{64*r}")
    for r in range(8):
        e(f"ds_read_b64 v[{a[r][0]}:{a[r][1]}], v6 offset:{512*r}")
    e("v_cvt_f32_u32 v99, v1")
    e(f"v_mul_f32 v99, {f32hex(1.0/512)}, v99")
    twiddles(e, 99, range(1, 8), tw, 98)
    e("s_waitcnt lgkmcnt(0)")
    for r in range(1, 8):
        cmul_tw(e, a[r], a[r], tw[r-1], False, (94, 95))
    radix8(e, -1, a, b, t, pq, c, 16)
    for r in range(8):
        e(f"ds_write_b64 v6, v[{b[r][0]}:{b[r][1]}] offset:{512*r}")
    e("s_waitcnt lgkmcnt(0)")
    e("s_barrier")
    e("v_and_b32 v2, 7, v0")
    e("v_lshrrev_b32 v3, 3, v0")
    e("v_mul_u32_u24 v4, 4128, v2")
    e("s_lshl_b32 s18, s2, 6")
    e("v_lshlrev_b32 v5, 3, v2")
    e("v_add_u32 v5, s18, v5")
    for i in range(5):
        z1 = (20 + 4*i, 21 + 4*i); z2 = (22 + 4*i, 23 + 4*i)
        e(f"v_add_u32 v6, {64*i}, v3")
        e(f"v_sub_u32 v7, 512, v6")
        e(f"v_and_b32 v7, 511, v7")
        e(f"v_lshl_add_u32 v8, v6, 3, v4")
        e(f"v_lshl_add_u32 v9, v7, 3, v4")
        if i == 4:
            e("v_and_b32 v8, 0x7fff, v8")
        e(f"ds_read_b64 v[{z1[0]}:{z1[1]}], v8")
        e(f"ds_read_b64 v[{z2[0]}:{z2[1]}], v9")
    e("s_waitcnt lgkmcnt(0)")
    for i in range(5):
        z1 = (20 + 4*i, 21 + 4*i); z2 = (22 + 4*i, 23 + 4*i)
        if i == 4:
            e("v_cmp_gt_u32 vcc, 8, v0")
            e("s_and_saveexec_b64 s[24:25], vcc")
            e("s_cbranch_execz K1_END")
        e(f"v_add_u32 v6, {64*i}, v3")
        e("v_cvt_f32_u32 v60, v6")
        e(f"v_mul_f32 v60, {f32hex(1.0/1024)}, v60")
        e("v_cos_f32 v61, v60")
        e("v_sin_f32 v62, v60")
        e(f"v_add_f32 v50, v{z1[0]}, v{z2[0]}")
        e(f"v_sub_f32 v51, v{z1[1]}, v{z2[1]}")
        e(f"v_add_f32 v52, v{z1[1]}, v{z2[1]}")
        e(f"v_sub_f32 v53, v{z2[0]}, v{z1[0]}")
        e("v_mul_f32 v54, v52, v61")
        e("v_fmac_f32 v54, v53, v62")
        e("v_mul_f32 v55, v53, v61")
        e("v_fma_f32 v55, -v52, v62, v55")
        e("v_add_f32 v56, v50, v54")
        e("v_add_f32 v57, v51, v55")
        e("v_sub_f32 v58, v50, v54")
        e("v_sub_f32 v59, v55, v51")
        e("v_lshl_add_u32 v8, v6, 14, v5")
        e("v_sub_u32 v7, 512, v6")
        e("v_lshl_add_u32 v9, v7, 14, v5")
        e("buffer_store_dwordx2 v[56:57], v8, s[12:15], 0 offen")
        e("buffer_store_dwordx2 v[58:59], v9, s[12:15], 0 offen")
        e.nop(2)
    e.label("K1_END")
    e("s_endpgm")

def fft2048(e, sg, a, b, t, pq, c, tw2, tw3, tw4, vW1, vW2, vW3, vR, reg0, reg1):
    conj = sg > 0
    radix8(e, sg, a, b, t, pq, c, 16)
    for i in range(4):
        e(f"ds_write_b128 v{vW1}, v[{b[2*i][0]}:{b[2*i][0]+3}] offset:{reg0+16*i}")
    e("s_waitcnt lgkmcnt(0)")
    e("s_barrier")
    for r in range(8):
        e(f"ds_read_b64 v[{a[r][0]}:{a[r][1]}], v{vR} offset:{reg0+2048*r}")
    e("s_waitcnt lgkmcnt(0)")
    for r in range(1, 8):
        cmul_tw(e, a[r], a[r], tw2[r-1], conj, (94, 95))
    radix8(e, sg, a, b, t, pq, c, 16)
    for r in range(8):
        e(f"ds_write_b64 v{vW2}, v[{b[r][0]}:{b[r][1]}] offset:{reg1+64*r}")
    e("s_waitcnt lgkmcnt(0)")
    e("s_barrier")
    for r in range(8):
        e(f"ds_read_b64 v[{a[r][0]}:{a[r][1]}], v{vR} offset:{reg1+2048*r}")
    e("s_waitcnt lgkmcnt(0)")
    for r in range(1, 8):
        cmul_tw(e, a[r], a[r], tw3[r-1], conj, (94, 95))
    radix8(e, sg, a, b, t, pq, c, 16)
    for r in range(8):
        e(f"ds_write_b64 v{vW3}, v[{b[r][0]}:{b[r][1]}] offset:{reg0+512*r}")
    e("s_waitcnt lgkmcnt(0)")
    e("s_barrier")
    for r in range(8):
        e(f"ds_read_b64 v[{a[r][0]}:{a[r][1]}], v{vR} offset:{reg0+2048*r}")
    e("s_waitcnt lgkmcnt(0)")
    for h in range(2):
        for r in range(1, 4):
            cmul_tw(e, a[2*r+h], a[2*r+h], tw4[h][r-1], conj, (94, 95))
        radix4(e, sg, [a[h], a[2+h], a[4+h], a[6+h]], [b[h], b[2+h], b[4+h], b[6+h]], c)

def gen_k2(e):
    name = "k2_kernel"
    kernel_header(e, name)
    e("s_cmp_ge_u32 s2, 513")
    e("s_cbranch_scc1 K2_END")
    stamp(e, 0)
    e("s_load_dwordx4 s[4:7], s[0:1], 8")
    e("s_load_dwordx2 s[28:29], s[0:1], 72")
    e("s_waitcnt lgkmcnt(0)")
    e.srd(8, 4, W_BYTES)
    e.srd(32, 6, W_BYTES)
    e.srd(12, 28, XF_BYTES, XF_OFF)
    e(f"s_mov_b32 s16, {SQH}")
    e("s_lshl_b32 s17, s2, 14")
    a = cpx(20, 8); b = cpx(36, 8); t = cpx(52, 8); pq = cpx(68, 2); c = cpx(72, 4)
    tw2 = cpx(100, 7); tw3 = cpx(114, 7); tw4 = [cpx(128, 3), cpx(134, 3)]
    wv = list(range(140, 156))
    e("v_lshlrev_b32 v1, 3, v0")
    for q in range(8):
        e(f"s_add_u32 s{40+q}, s17, {2048*q}")
    for q in range(8):
        e(f"buffer_load_dwordx2 v[{a[q][0]}:{a[q][1]}], v1, s[12:15], s{40+q} offen")
    e("v_mul_u32_u24 v2, 1026, v0")
    e("s_lshl_b32 s18, s2, 1")
    e("v_add_u32 v2, s18, v2")
    for q in range(8):
        e(f"s_mov_b32 s{50+q}, {262656*q}")
    for q in range(8):
        e(f"buffer_load_ushort v{wv[2*q]}, v2, s[8:11], s{50+q} offen")
        e(f"buffer_load_ushort v{wv[2*q+1]}, v2, s[32:35], s{50+q} offen")
    e("v_lshlrev_b32 v3, 6, v0")
    e("v_lshrrev_b32 v4, 3, v0")
    e("v_lshlrev_b32 v4, 9, v4")
    e("v_and_b32 v5, 7, v0")
    e("v_lshl_add_u32 v4, v5, 3, v4")
    e("v_lshrrev_b32 v6, 6, v0")
    e("v_lshlrev_b32 v6, 12, v6")
    e("v_and_b32 v7, 63, v0")
    e("v_lshl_add_u32 v6, v7, 3, v6")
    e("v_cvt_f32_u32 v99, v5")
    e(f"v_mul_f32 v99, {f32hex(1.0/64)}, v99")
    twiddles(e, 99, range(1, 8), tw2, 98)
    e("v_cvt_f32_u32 v99, v7")
    e(f"v_mul_f32 v99, {f32hex(1.0/512)}, v99")
    twiddles(e, 99, range(1, 8), tw3, 98)
    e("v_cvt_f32_u32 v99, v0")
    e(f"v_mul_f32 v99, {f32hex(1.0/2048)}, v99")
    twiddles(e, 99, range(1, 4), tw4[0], 98)
    e(f"v_add_f32 v99, {f32hex(0.125)}, v99")
    twiddles(e, 99, range(1, 4), tw4[1], 98)
    stamp(e, 1)
    e("s_waitcnt vmcnt(16)")
    stamp(e, 2)
    fft2048(e, -1, a, b, t, pq, c, tw2, tw3, tw4, 3, 4, 6, 1, 0, 16384)
    stamp(e, 3)
    e("s_waitcnt vmcnt(0)")
    stamp(e, 4)
    sc = f32hex(2.0 ** -22)
    for q in range(8):
        e(f"v_lshlrev_b32 v{wv[2*q]}, 16, v{wv[2*q]}")
        e(f"v_lshlrev_b32 v{wv[2*q+1]}, 16, v{wv[2*q+1]}")
        e(f"v_mul_f32 v{wv[2*q]}, {sc}, v{wv[2*q]}")
        e(f"v_mul_f32 v{wv[2*q+1]}, {sc}, v{wv[2*q+1]}")
        cmul_tw(e, a[q], b[q], (wv[2*q], wv[2*q+1]), False, (94, 95))
    fft2048(e, +1, a, b, t, pq, c, tw2, tw3, tw4, 3, 4, 6, 1, 16384, 0)
    for q in range(8):
        e(f"buffer_store_dwordx2 v[{b[q][0]}:{b[q][1]}], v1, s[12:15], s{40+q} offen")
    stamp(e, 5)
    e("s_waitcnt vmcnt(0)")
    stamp(e, 6)
    stamp_flush(e, 7, "K2")
    e.label("K2_END")
    e("s_endpgm")

def gen_k3(e):
    name = "k3_kernel"
    kernel_header(e, name)
    e("s_cmp_ge_u32 s2, 256")
    e("s_cbranch_scc1 K3_END")
    stamp(e, 0)
    e("s_load_dwordx2 s[4:5], s[0:1], 0")
    e("s_load_dwordx2 s[6:7], s[0:1], 72")
    e("s_load_dwordx2 s[28:29], s[0:1], 56")
    e("v_and_b32 v1, 63, v0")
    e("v_lshrrev_b32 v2, 6, v0")
    e("s_waitcnt lgkmcnt(0)")
    e.srd(8, 4, X_BYTES)
    e.srd(12, 6, XF_BYTES, XF_OFF)
    e.srd(32, 28, X_BYTES)
    e.srd(36, 6, LN2_BYTES, LN2_OFF)
    e(f"s_mov_b32 s16, {SQH}")
    e(f"s_mov_b32 s17, {f32hex(1e-5)}")
    e("s_lshl_b32 s19, s2, 14")
    e("v_lshlrev_b32 v3, 11, v2")
    e("v_lshl_add_u32 v3, v1, 2, v3")
    for r in range(8):
        e(f"buffer_load_dword v{100+r}, v3, s[8:11], s19 offen offset:{256*r}")
    e("v_and_b32 v10, 7, v0")
    e("v_lshrrev_b32 v11, 3, v0")
    e("v_mul_u32_u24 v12, 4128, v10")
    e("s_lshl_b32 s18, s2, 6")
    e("v_lshlrev_b32 v13, 3, v10")
    e("v_add_u32 v13, s18, v13")
    for i in range(5):
        y1 = (20 + 4*i, 21 + 4*i); y2 = (22 + 4*i, 23 + 4*i)
        e(f"v_add_u32 v6, {64*i}, v11")
        if i == 4:
            e("v_min_u32 v6, 256, v6")
        e("v_sub_u32 v7, 512, v6")
        e("v_lshl_add_u32 v8, v6, 14, v13")
        e("v_lshl_add_u32 v9, v7, 14, v13")
        e(f"buffer_load_dwordx2 v[{y1[0]}:{y1[1]}], v8, s[12:15], 0 offen")
        e(f"buffer_load_dwordx2 v[{y2[0]}:{y2[1]}], v9, s[12:15], 0 offen")
    stamp(e, 1)
    e("s_waitcnt vmcnt(0)")
    stamp(e, 2)
    for i in range(5):
        y1 = (20 + 4*i, 21 + 4*i); y2 = (22 + 4*i, 23 + 4*i)
        e(f"v_add_u32 v6, {64*i}, v11")
        if i == 0:
            e("v_cmp_eq_u32 vcc, 0, v6")
            e.nop(2)
            e(f"v_cndmask_b32 v{y1[1]}, v{y1[1]}, 0, vcc") if False else None
            e(f"v_mov_b32 v60, 0")
            e(f"v_cndmask_b32 v{y1[1]}, v{y1[1]}, v60, vcc")
            e(f"v_cndmask_b32 v{y2[1]}, v{y2[1]}, v60, vcc")
        if i == 4:
            e("v_cmp_gt_u32 vcc, 8, v0")
            e("s_and_saveexec_b64 s[24:25], vcc")
            e("s_cbranch_execz K3_SKIP")
        e("v_cvt_f32_u32 v60, v6")
        e(f"v_mul_f32 v60, {f32hex(1.0/1024)}, v60")
        e("v_cos_f32 v61, v60")
        e("v_sin_f32 v62, v60")
        e(f"v_add_f32 v50, v{y1[0]}, v{y2[0]}")
        e(f"v_sub_f32 v51, v{y1[1]}, v{y2[1]}")
        e(f"v_sub_f32 v52, v{y1[0]}, v{y2[0]}")
        e(f"v_add_f32 v53, v{y1[1]}, v{y2[1]}")
        e("v_mul_f32 v54, v52, v61")
        e("v_fma_f32 v54, -v53, v62, v54")
        e("v_mul_f32 v55, v53, v61")
        e("v_fmac_f32 v55, v52, v62")
        e("v_sub_f32 v56, v50, v55")
        e("v_add_f32 v57, v51, v54")
        e("v_add_f32 v58, v50, v55")
        e("v_sub_f32 v59, v54, v51")
        e("v_sub_u32 v7, 512, v6")
        e("v_and_b32 v7, 511, v7")
        e("v_lshl_add_u32 v8, v6, 3, v12")
        e("v_lshl_add_u32 v9, v7, 3, v12")
        e("ds_write_b64 v8, v[56:57]")
        e("ds_write_b64 v9, v[58:59]")
    e.label("K3_SKIP")
    e("s_mov_b64 exec, -1")
    e("s_waitcnt lgkmcnt(0)")
    e("s_barrier")
    stamp(e, 3)
    a = cpx(20, 8); b = cpx(36, 8); t = cpx(52, 8); pq = cpx(68, 2); c = cpx(72, 4); tw = cpx(80, 7)
    e("v_mul_u32_u24 v4, 4128, v2")
    e("v_lshl_add_u32 v5, v1, 6, v4")
    e("v_lshl_add_u32 v6, v1, 3, v4")
    e("v_lshrrev_b32 v7, 3, v1")
    e("v_lshlrev_b32 v7, 9, v7")
    e("v_and_b32 v8, 7, v1")
    e("v_lshl_add_u32 v7, v8, 3, v7")
    e("v_add_u32 v7, v7, v4")
    for r in range(8):
        e(f"ds_read_b64 v[{a[r][0]}:{a[r][1]}], v6 offset:{512*r}")
    e("s_waitcnt lgkmcnt(0)")
    radix8(e, +1, a, b, t, pq, c, 16)
    for i in range(4):
        e(f"ds_write_b128 v5, v[{b[2*i][0]}:{b[2*i][0]+3}] offset:{16*i}")
    for r in range(8):
        e(f"ds_read_b64 v[{a[r][0]}:{a[r][1]}], v6 offset:{512*r}")
    e("v_cvt_f32_u32 v99, v8")
    e(f"v_mul_f32 v99, {f32hex(1.0/64)}, v99")
    twiddles(e, 99, range(1, 8), tw, 98)
    e("s_waitcnt lgkmcnt(0)")
    for r in range(1, 8):
        cmul_tw(e, a[r], a[r], tw[r-1], True, (94, 95))
    radix8(e, +1, a, b, t, pq, c, 16)
    for r in range(8):
        e(f"ds_write_b64 v7, v[{b[r][0]}:{b[r][1]}] offset:{64*r}")
    for r in range(8):
        e(f"ds_read_b64 v[{a[r][0]}:{a[r][1]}], v6 offset:{512*r}")
    e("v_cvt_f32_u32 v99, v1")
    e(f"v_mul_f32 v99, {f32hex(1.0/512)}, v99")
    twiddles(e, 99, range(1, 8), tw, 98)
    e("s_waitcnt lgkmcnt(0)")
    for r in range(1, 8):
        cmul_tw(e, a[r], a[r], tw[r-1], True, (94, 95))
    radix8(e, +1, a, b, t, pq, c, 16)
    stamp(e, 4)
    for r in range(8):
        e(f"v_cvt_pk_bf16_f32 v{b[r][0]}, v{b[r][0]}, v{b[r][1]}")
        e(f"v_and_b32 v{b[r][1]}, 0xffff0000, v{b[r][0]}")
        e(f"v_lshlrev_b32 v{b[r][0]}, 16, v{b[r][0]}")
        e(f"v_lshlrev_b32 v94, 16, v{100+r}")
        e(f"v_and_b32 v95, 0xffff0000, v{100+r}")
        e(f"v_add_f32 v{b[r][0]}, v{b[r][0]}, v94")
        e(f"v_add_f32 v{b[r][1]}, v{b[r][1]}, v95")
        e(f"v_cvt_pk_bf16_f32 v{10+r}, v{b[r][0]}, v{b[r][1]}")
        e(f"buffer_store_dword v{10+r}, v3, s[32:35], s19 offen offset:{256*r}")
        e(f"v_lshlrev_b32 v{b[r][0]}, 16, v{10+r}")
        e(f"v_and_b32 v{b[r][1]}, 0xffff0000, v{10+r}")
    xs = [x for p in b for x in p]
    layernorm16(e, xs, 94, 95, 96, 97, 98, 17)
    for r in range(8):
        e(f"v_cvt_pk_bf16_f32 v{20+r}, v{b[r][0]}, v{b[r][1]}")
        e(f"buffer_store_dword v{20+r}, v3, s[36:39], s19 offen offset:{256*r}")
    stamp(e, 5)
    e("s_waitcnt vmcnt(0)")
    stamp(e, 6)
    stamp_flush(e, 7, "K3")
    e.label("K3_END")
    e("s_endpgm")
```

```python
from trace import trace_begin, trace_end
from emit import *
import fft_kernels as F
from gemm_kernels import *

NT0 = 24

def gen_k5(e):
    F.kernel_header(e, "k5_kernel")
    trace_begin(e)
    BUF = 32768
    e("s_cmp_ge_u32 s2, 256")
    e("s_cbranch_scc1 K5_END")
    stamp(e, 0)
    e("s_load_dwordx4 s[4:7], s[0:1], 48")
    e("s_load_dwordx4 s[28:31], s[0:1], 64")
    e("v_and_b32 v1, 63, v0")
    e("v_lshrrev_b32 v2, 6, v0")
    e.nop(1)
    e("v_readfirstlane_b32 s27, v2")
    e("s_and_b32 s3, s2, 7")
    e("s_lshr_b32 s34, s2, 3")
    e("s_lshr_b32 s54, s3, 1")
    e("s_and_b32 s54, s54, 1")
    e("s_lshl_b32 s54, s54, 3")
    e("s_and_b32 s35, s34, 7")
    e("s_add_u32 s52, s54, s35")
    e("s_lshr_b32 s35, s3, 2")
    e("s_lshl_b32 s35, s35, 2")
    e("s_lshr_b32 s34, s34, 3")
    e("s_add_u32 s53, s35, s34")
    e("s_lshr_b32 s36, s27, 1")
    e("s_and_b32 s37, s27, 1")
    e("s_lshl_b32 s39, s52, 3")
    e("s_add_u32 s39, s39, s53")
    e("s_lshr_b32 s40, s39, 1")
    e("s_lshl_b32 s40, s40, 2")
    e("s_and_b32 s41, s39, 1")
    e("s_lshl_b32 s41, s41, 4")
    e("s_lshl_b32 s42, 1, s41")
    e("s_lshl_b32 s43, 0x100, s41")
    e("s_waitcnt lgkmcnt(0)")
    e.srd(44, 28, 256)
    e("s_cmp_lg_u32 s27, 0")
    e("s_cbranch_scc1 K5_TK")
    e("v_mov_b32 v6, s42")
    e("v_mov_b32 v7, s40")
    e("s_mov_b64 exec, 1")
    e("buffer_atomic_add v6, v7, s[44:47], 0 offen sc0 sc1")
    e("s_mov_b64 exec, -1")
    e.label("K5_TK")
    e.srd(8, 30, HH_BYTES, HH_OFF)
    e.srd(12, 4, WD_BYTES)
    e.srd(16, 6, F.X_BYTES)
    e.srd(20, 30, PART_BYTES, PART_OFF)
    e("s_lshl_b32 s30, s27, 12")
    e("s_add_u32 s31, s30, 16384")
    e("v_lshrrev_b32 v3, 3, v1")
    e("v_and_b32 v4, 7, v1")
    e("v_xor_b32 v4, v4, v3")
    e("v_lshlrev_b32 v4, 4, v4")
    e("v_mul_u32_u24 v3, 7168, v3")
    e("v_add_u32 v10, v3, v4")
    e("v_lshrrev_b32 v3, 4, v1")
    e("v_and_b32 v4, 15, v1")
    for b_ in range(2):
        e(f"v_or_b32 v5, {4*b_}, v3")
        e("v_lshlrev_b32 v5, 1, v5")
        e("v_xor_b32 v5, v5, v4")
        e("v_lshlrev_b32 v5, 4, v5")
        e(f"v_lshl_add_u32 v{11+b_}, v3, 11, v5")
    e("v_and_b32 v3, 15, v1")
    e("v_lshrrev_b32 v4, 4, v1")
    e("v_and_b32 v5, 7, v1")
    e("s_lshl_b32 s3, s36, 13")
    for hh in range(2):
        e(f"v_add_u32 v8, {4*hh}, v4")
        e("v_xor_b32 v8, v8, v5")
        e("v_lshlrev_b32 v8, 4, v8")
        e("v_lshl_add_u32 v8, v3, 7, v8")
        e(f"v_add_u32 v{14+hh}, s3, v8")
        e(f"v_add_u32 v{16+hh}, {2*BUF}, v{14+hh}")
    e("v_lshrrev_b32 v5, 2, v3")
    e("v_lshl_add_u32 v8, v4, 3, v5")
    e("v_lshlrev_b32 v8, 8, v8")
    e("v_and_b32 v9, 3, v1")
    e("v_lshl_add_u32 v8, v9, 3, v8")
    e("v_add_u32 v8, 16384, v8")
    e("v_and_b32 v9, 1, v4")
    e("v_lshl_or_b32 v5, v9, 2, v5")
    e("s_lshl_b32 s3, s37, 2")
    for j in range(4):
        e(f"s_add_u32 s4, s3, {j}")
        e("v_xor_b32 v9, s4, v5")
        e(f"v_lshl_add_u32 v{18+j}, v9, 5, v8")
        e(f"v_add_u32 v{22+j}, {2*BUF}, v{18+j}")
    e("s_lshl_b32 s3, s36, 6")
    e("v_add_u32 v3, s3, v3")
    e("v_lshlrev_b32 v3, 11, v3")
    e("s_lshl_b32 s3, s37, 7")
    e("v_lshl_add_u32 v3, v4, 3, v3")
    e("v_add_u32 v26, s3, v3")
    e("v_lshlrev_b32 v27, 4, v1")
    e("s_and_b32 s56, s2, 1")
    e("s_mov_b32 s55, 0")
    e("s_mov_b32 s26, 5")
    e(f"s_mul_i32 s35, s56, {55*64}")
    e("s_mov_b32 s57, 128")
    e(f"s_mov_b32 s58, {64*2048}")
    e("s_cmp_eq_u32 s56, 1")
    e("s_cselect_b32 s57, -128, s57")
    e(f"s_cselect_b32 s58, {-64*2048}, s58")
    e("s_lshl_b32 s24, s52, 7")
    e("s_lshl_b32 s3, s27, 5")
    e("s_add_u32 s24, s24, s3")
    e("s_mul_i32 s24, s24, 7168")
    e("s_lshl_b32 s3, s35, 1")
    e("s_add_u32 s24, s24, s3")
    e("s_lshl_b32 s3, s27, 4")
    e("s_add_u32 s25, s35, s3")
    e("s_lshl_b32 s25, s25, 11")
    e("s_lshl_b32 s3, s53, 8")
    e("s_add_u32 s25, s25, s3")
    e("v_mov_b32 v28, 0x20000")

    SETS = [dict(A=32, B=48), dict(A=64, B=80)]
    ACC = 128
    def dma(buf):
        g = []
        o = buf * BUF
        for ii in range(4):
            g.append([f"s_add_u32 m0, s30, {o + ii*1024}", f"s_add_u32 s33, s24, {ii*8*7168}",
                      f"buffer_load_dwordx4 v10, s[8:11], s33 offen lds"])
        for ii in range(4):
            g.append([f"s_add_u32 m0, s31, {o + ii*1024}", f"s_add_u32 s33, s25, {ii*8192}",
                      f"buffer_load_dwordx4 v{11+(ii>>1)}, s[12:15], s33 offen lds"])
        if 'nodma' in EXP: g = [['s_nop 0'] for _ in g]
        return g
    def advance():
        return ["s_add_u32 s24, s24, s57", "s_add_u32 s25, s25, s58"]
    def reads(buf, hh, st):
        g = []
        S = SETS[st]
        bh, bl = buf >> 1, buf & 1
        for i in range(4):
            g.append([f"ds_read_b128 v[{S['A']+4*i}:{S['A']+4*i+3}], v{14+2*bh+hh} offset:{bl*BUF+i*2048}"])
        for j in range(4):
            for p in range(2):
                off = bl * BUF + hh * 8192 + p * 1024
                r = S['B'] + 4 * j + 2 * p
                g.append([f"ds_read_b64_tr_b16 v[{r}:{r+1}], v{18+4*bh+j} offset:{off}"])
        return g
    def mfmas(st):
        S = SETS[st]
        m = []
        for j in range(4):
            for i in range(4):
                acc = ACC + (i * 4 + j) * 4
                m.append(f"v_mfma_f32_16x16x32_bf16 v[{acc}:{acc+3}], v[{S['B']+4*j}:{S['B']+4*j+3}], v[{S['A']+4*i}:{S['A']+4*i+3}], v[{acc}:{acc+3}]")
        if 'nomfma' in EXP: m = ['s_nop 0' for _ in m]
        return m
    for t_ in range(3):
        for grp in dma(t_):
            for x in grp: e(x)
        for x in advance(): e(x)
    for i in range(64):
        e(f"v_mov_b32 v{ACC+i}, 0")
    e("s_waitcnt vmcnt(16)")
    e("s_barrier")
    for grp in reads(0, 0, 0):
        for x in grp: e(x)

    def tile(buf, do_dma, vm, last=False):
        e("s_waitcnt lgkmcnt(0)")
        for x in interleave(mfmas(0), reads(buf, 1, 1), 0, 1): e(x)
        if last:
            e("s_waitcnt lgkmcnt(0)")
            for x in mfmas(1): e(x)
            return
        e(f"s_waitcnt vmcnt({vm}) lgkmcnt(0)")
        e("s_barrier")
        side = reads((buf + 1) & 3, 0, 0)
        if do_dma:
            d = dma((buf + 3) & 3)
            merged = []
            rs = side
            while rs or d:
                if rs: merged.append(rs.pop(0))
                if d: merged.append(d.pop(0))
            side = merged + [advance()]
        for x in interleave(mfmas(1), side, 0, 1): e(x)

    def loads_ph():
        e("s_lshl_b32 s34, s39, 16")
        e("s_lshl_b32 s3, s27, 14")
        e("s_add_u32 s34, s34, s3")
        for q in range(16):
            e(f"s_add_u32 s33, s34, {q*1024}")
            e(f"buffer_load_dwordx4 v[{192+4*q}:{192+4*q+3}], v27, s[20:23], s33 offen sc1")
        e("s_lshl_b32 s42, s52, 18")
        e("s_lshl_b32 s3, s53, 8")
        e("s_add_u32 s42, s42, s3")
        for i in range(4):
            e(f"s_add_u32 s{48+i}, s42, {i*16*2048}")
        for i in range(4):
            for j in range(4):
                r = 96 + (i * 4 + j) * 2
                e(f"buffer_load_dwordx2 v[{r}:{r+1}], v26, s[16:19], s{48+i} offen offset:{j*32}")

    stamp(e, 1)
    e.label("K5_LOOP")
    for b_ in range(4):
        tile(b_, True, 8)
    e("s_cmp_lg_u32 s27, 0")
    e("s_cbranch_scc1 K5_NOTK")
    e("s_mov_b64 exec, 1")
    e("ds_write_b32 v28, v6")
    e("s_mov_b64 exec, -1")
    e.label("K5_NOTK")
    e("s_sub_u32 s26, s26, 1")
    e("s_cmp_lg_u32 s26, 0")
    e("s_cbranch_scc1 K5_LOOP")
    e("s_cmp_lg_u32 s55, 0")
    e("s_cbranch_scc1 K5_TAIL")
    e("s_mov_b32 s55, 1")
    e("ds_read_b32 v29, v28")
    e("s_waitcnt lgkmcnt(0)")
    e.nop(1)
    e("v_readfirstlane_b32 s38, v29")
    e.nop(4)
    e("s_lshr_b32 s38, s38, s41")
    e("s_and_b32 s38, s38, 1")
    e(f"s_mov_b32 s26, {(56-NT0-24)//4 + 0}")
    e("s_cmp_eq_u32 s38, 1")
    e("s_cbranch_scc1 K5_LOOP")
    e.label("K5_TAIL")
    e("s_mov_b32 s59, 0")
    e("v_mov_b32 v7, s40")
    e("buffer_load_dword v29, v7, s[44:47], 0 offen sc1")
    tile(0, True, 8)
    e("s_cmp_eq_u32 s38, 0")
    e("s_cbranch_scc1 K5_NOPRE")
    e("s_waitcnt vmcnt(8)")
    e("v_readfirstlane_b32 s35, v29")
    e.nop(4)
    e("s_and_b32 s35, s35, s43")
    e("s_cmp_eq_u32 s35, 0")
    e("s_cbranch_scc1 K5_NOPRE")
    e("s_mov_b32 s59, 1")
    loads_ph()
    tile(1, False, 40)
    tile(2, False, 32)
    tile(3, False, 0, last=True)
    e.nop(16)
    stamp(e, 2)
    e("s_branch K5_GOT")
    e.label("K5_NOPRE")
    tile(1, False, 8)
    tile(2, False, 0)
    tile(3, False, 0, last=True)
    e.nop(16)
    stamp(e, 2)
    e("s_lshl_b32 s34, s39, 16")
    e("s_lshl_b32 s3, s27, 14")
    e("s_add_u32 s34, s34, s3")
    e("s_cmp_eq_u32 s38, 1")
    e("s_cbranch_scc1 K5_SECOND")
    for q in range(16):
        e(f"s_add_u32 s33, s34, {q*1024}")
        e(f"buffer_store_dwordx4 v[{ACC+4*q}:{ACC+4*q+3}], v27, s[20:23], s33 offen sc1")
    e("s_waitcnt vmcnt(0)")
    e("s_barrier")
    e("s_cmp_lg_u32 s27, 0")
    e("s_cbranch_scc1 K5_END")
    e("v_mov_b32 v6, s43")
    e("v_mov_b32 v7, s40")
    e("s_mov_b64 exec, 1")
    e("buffer_atomic_add v6, v7, s[44:47], 0 offen sc1")
    e("s_waitcnt vmcnt(0)")
    e("s_branch K5_END")
    e.label("K5_SECOND")
    e("s_cmp_eq_u32 s59, 1")
    e("s_cbranch_scc1 K5_GOT")
    e("v_mov_b32 v7, s40")
    e.label("K5_POLL")
    e("buffer_load_dword v6, v7, s[44:47], 0 offen sc1")
    e("s_waitcnt vmcnt(0)")
    e.nop(1)
    e("v_readfirstlane_b32 s35, v6")
    e.nop(4)
    e("s_and_b32 s35, s35, s43")
    e("s_cmp_lg_u32 s35, 0")
    e("s_cbranch_scc1 K5_POLL_DONE")
    e("s_sleep 2")
    e("s_branch K5_POLL")
    e.label("K5_POLL_DONE")
    loads_ph()
    e.label("K5_GOT")
    stamp(e, 3)
    e("s_waitcnt vmcnt(0)")
    for q in range(16):
        i, j = q // 4, q % 4
        a_ = ACC + q * 4
        r = 96 + q * 2
        e(f"v_pk_add_f32 v[{a_}:{a_+1}], v[{a_}:{a_+1}], v[{192+4*q}:{192+4*q+1}]")
        e(f"v_pk_add_f32 v[{a_+2}:{a_+3}], v[{a_+2}:{a_+3}], v[{192+4*q+2}:{192+4*q+3}]")
        for hp in range(2):
            e(f"v_cvt_pk_bf16_f32 v6, v{a_+2*hp}, v{a_+2*hp+1}")
            e(f"v_lshlrev_b32 v8, 16, v{r+hp}")
            e(f"v_and_b32 v9, 0xffff0000, v{r+hp}")
            e(f"v_and_b32 v7, 0xffff0000, v6")
            e(f"v_lshlrev_b32 v6, 16, v6")
            e(f"v_pk_add_f32 v[6:7], v[6:7], v[8:9]")
            e(f"v_cvt_pk_bf16_f32 v{r+hp}, v6, v7")
        e(f"buffer_store_dwordx2 v[{r}:{r+1}], v26, s[16:19], s{48+i} offen offset:{j*32}")
    stamp(e, 4)
    if 'stamp' in EXP:
        e("s_and_b32 s2, s2, 0xfe")
        e("s_add_u32 s2, s2, 1")
    stamp_flush(e, 5, "K5")
    e.label("K5_END")
    trace_end(e, 4, "K5")
    e("s_endpgm")

def add(stages, e, launches, kds, kd):
    launches.append("; @launch kernel=k5_kernel grid=(256,1,1) block=(256,1,1) lds=131088")
    gen_k5(e); kds.append(kd("k5_kernel", 256, 102))
```

```python
from trace import trace_begin, trace_end
from emit import *
import fft_kernels as F

HH_OFF = 0x2000000
HH_BYTES = 2048 * 3584 * 2
WG_BYTES = 1024 * 3584 * 2
WD_BYTES = 3584 * 1024 * 2
PART_OFF = 0x3000000
PART_BYTES = 128 * 65536
FLAG_OFF = 0x4000000

def interleave(main, side, start=0, every=1):
    out = []
    si = 0
    for i, m in enumerate(main):
        out.append(m)
        if i >= start and (i - start) % every == 0 and si < len(side):
            out.extend(side[si]); si += 1
    while si < len(side):
        out.extend(side[si]); si += 1
    return out

def gelu_pair(e, g0, g1, u0, u1, out, tmp, sc1, sc0):
    t0, t1, t2, t3 = tmp
    e(f"v_cvt_pk_bf16_f32 v{t0}, v{g0}, v{g1}")
    e(f"v_cvt_pk_bf16_f32 v{t1}, v{u0}, v{u1}")
    e(f"v_lshlrev_b32 v{g0}, 16, v{t0}")
    e(f"v_and_b32 v{g1}, 0xffff0000, v{t0}")
    e(f"v_lshlrev_b32 v{u0}, 16, v{t1}")
    e(f"v_and_b32 v{u1}, 0xffff0000, v{t1}")
    e(f"v_mul_f32 v{t0}, v{g0}, v{g0}")
    e(f"v_mul_f32 v{t1}, v{g1}, v{g1}")
    e(f"v_fma_f32 v{t0}, v{t0}, s{sc1}, v{t2 if False else t0}") if False else None
    e(f"v_mov_b32 v{t2}, s{sc0}")
    e(f"v_fma_f32 v{t0}, v{t0}, s{sc1}, v{t2}")
    e(f"v_fma_f32 v{t1}, v{t1}, s{sc1}, v{t2}")
    e(f"v_mul_f32 v{t0}, v{t0}, v{g0}")
    e(f"v_mul_f32 v{t1}, v{t1}, v{g1}")
    e(f"v_exp_f32 v{t0}, v{t0}")
    e(f"v_exp_f32 v{t1}, v{t1}")
    e.nop(1)
    e(f"v_add_f32 v{t0}, 1.0, v{t0}")
    e(f"v_add_f32 v{t1}, 1.0, v{t1}")
    e(f"v_rcp_f32 v{t0}, v{t0}")
    e(f"v_rcp_f32 v{t1}, v{t1}")
    e.nop(1)
    e(f"v_mul_f32 v{g0}, v{g0}, v{t0}")
    e(f"v_mul_f32 v{g1}, v{g1}, v{t1}")
    e(f"v_cvt_pk_bf16_f32 v{t0}, v{g0}, v{g1}")
    e(f"v_lshlrev_b32 v{g0}, 16, v{t0}")
    e(f"v_and_b32 v{g1}, 0xffff0000, v{t0}")
    e(f"v_mul_f32 v{g0}, v{g0}, v{u0}")
    e(f"v_mul_f32 v{g1}, v{g1}, v{u1}")
    e(f"v_cvt_pk_bf16_f32 v{out}, v{g0}, v{g1}")

import os
EXP=os.environ.get('EXP','')
def stamp(e, i):
    if 'stamp' not in EXP: return
    e(f"s_memrealtime s[{60+2*i}:{61+2*i}]")
    e("s_waitcnt lgkmcnt(0)")
def stamp_flush(e, n, tag="K4"):
    if 'stamp' not in EXP: return
    e("s_load_dwordx2 s[80:81], s[0:1], 64")
    e("s_waitcnt lgkmcnt(0)")
    e.srd(84, 80, 256)
    e("s_cmp_lg_u32 s2, 37")
    e(f"s_cbranch_scc1 {tag}_NOSTAMP")
    e("v_mov_b32 v200, 0")
    for i in range(n):
        e(f"v_mov_b32 v201, s{60+2*i}")
        e(f"buffer_store_dword v201, v200, s[84:87], 0 offen offset:{4*i}")
    e.label(f"{tag}_NOSTAMP")
def gen_k4(e):
    F.kernel_header(e, "k4_kernel")
    trace_begin(e)
    BUF = 73728
    e("s_cmp_ge_u32 s2, 256")
    e("s_cbranch_scc1 K4_END")
    stamp(e, 0)
    e("s_load_dwordx4 s[4:7], s[0:1], 32")
    e("s_load_dwordx2 s[28:29], s[0:1], 72")
    e("v_and_b32 v1, 63, v0")
    e("v_lshrrev_b32 v2, 6, v0")
    e.nop(1)
    e("v_readfirstlane_b32 s27, v2")
    e("s_waitcnt lgkmcnt(0)")
    e.srd(8, 28, F.LN2_BYTES, F.LN2_OFF)
    e.srd(12, 4, WG_BYTES)
    e.srd(16, 6, WG_BYTES)
    e.srd(20, 28, HH_BYTES, HH_OFF)
    e("s_and_b32 s3, s2, 7")
    e("s_lshr_b32 s4, s2, 3")
    e("s_and_b32 s5, s3, 1")
    e("s_lshl_b32 s5, s5, 3")
    e("s_and_b32 s6, s4, 7")
    e("s_add_u32 s5, s5, s6")
    e("s_lshr_b32 s6, s3, 1")
    e("s_lshl_b32 s6, s6, 2")
    e("s_lshr_b32 s7, s4, 3")
    e("s_add_u32 s6, s6, s7")
    e("s_lshr_b32 s36, s27, 1")
    e("s_and_b32 s37, s27, 1")
    e("s_lshl_b32 s24, s5, 18")
    e("s_lshl_b32 s3, s27, 16")
    e("s_add_u32 s24, s24, s3")
    e("s_mov_b32 s25, 0")
    e("s_lshl_b32 s30, s27, 12")
    e("s_mul_i32 s31, s27, 7168")
    e("s_add_u32 s32, s31, 45056")
    e("s_add_u32 s31, s31, 16384")
    e("v_lshrrev_b32 v3, 3, v1")
    e("v_and_b32 v4, 7, v1")
    e("v_xor_b32 v4, v4, v3")
    e("v_lshlrev_b32 v4, 4, v4")
    e("v_lshl_add_u32 v10, v3, 11, v4")
    e("s_mul_i32 s3, s27, 448")
    e("v_add_u32 v3, s3, v1")
    e("s_mul_i32 s3, s6, 448")
    e(f"s_mov_b32 s4, {(2**32 + 27)//28}")
    for ii in range(7):
        e(f"v_add_u32 v4, {64*ii}, v3")
        e("v_mul_hi_u32 v5, v4, s4")
        e("v_mul_u32_u24 v6, 28, v5")
        e("v_sub_u32 v6, v4, v6")
        e("v_lshrrev_b32 v7, 3, v5")
        e("v_and_b32 v7, 1, v7")
        e("v_lshlrev_b32 v7, 1, v7")
        e("v_xor_b32 v6, v6, v7")
        e("v_mul_u32_u24 v5, 7168, v5")
        e("v_lshl_add_u32 v5, v6, 4, v5")
        e(f"v_add_u32 v{11+ii}, s3, v5")
    e("v_and_b32 v3, 15, v1")
    e("v_lshrrev_b32 v4, 4, v1")
    e("v_and_b32 v5, 7, v1")
    e("s_lshl_b32 s3, s36, 13")
    for hh in range(2):
        e(f"v_add_u32 v6, {4*hh}, v4")
        e("v_xor_b32 v6, v6, v5")
        e("v_lshlrev_b32 v6, 4, v6")
        e("v_lshl_add_u32 v6, v3, 7, v6")
        e(f"v_add_u32 v{18+hh}, s3, v6")
        e(f"v_add_u32 v{20+hh}, {BUF}, v{18+hh}")
    e("v_lshrrev_b32 v5, 2, v3")
    e("v_lshl_add_u32 v5, v4, 3, v5")
    e("v_mul_u32_u24 v5, 448, v5")
    e("v_and_b32 v6, 3, v1")
    e("v_lshl_add_u32 v5, v6, 3, v5")
    e("s_mul_i32 s3, s37, 224")
    e("s_add_u32 s3, s3, 16384")
    e("v_add_u32 v5, s3, v5")
    e("v_and_b32 v6, 1, v4")
    e("v_lshlrev_b32 v6, 5, v6")
    e("v_add_u32 v22, v5, v6")
    e("v_sub_u32 v23, v5, v6")
    e(f"v_add_u32 v24, {BUF}, v22")
    e(f"v_add_u32 v25, {BUF}, v23")
    e("s_cmp_eq_u32 s37, 1")
    e("s_cbranch_scc0 K4_NOSWAP")
    for a_, b_ in ((22, 23), (24, 25)):
        e(f"v_mov_b32 v6, v{a_}")
        e(f"v_mov_b32 v{a_}, v{b_}")
        e(f"v_mov_b32 v{b_}, v6")
    e.label("K4_NOSWAP")

    SETS = [dict(A=32, B=48), dict(A=104, B=120)]

    def dma(buf):
        g = []
        o = buf * BUF
        for ii in range(4):
            g.append([f"s_add_u32 m0, s30, {o + ii*1024}", f"s_add_u32 s33, s24, {ii*16384}",
                      f"buffer_load_dwordx4 v10, s[8:11], s33 offen lds"])
        for ii in range(7):
            g.append([f"s_add_u32 m0, s31, {o + ii*1024}", "s_nop 0",
                      f"buffer_load_dwordx4 v{11+ii}, s[12:15], s25 offen lds"])
            g.append([f"s_add_u32 m0, s32, {o + ii*1024}", "s_nop 0",
                      f"buffer_load_dwordx4 v{11+ii}, s[16:19], s25 offen lds"])
        if 'nodma' in EXP: g = [['s_nop 0'] for _ in g]
        return g
    def advance():
        return ["s_add_u32 s24, s24, 128", f"s_add_u32 s25, s25, {64*7168}"]
    def reads(buf, hh, st):
        g = []
        S = SETS[st]
        for i in range(4):
            g.append([f"ds_read_b128 v[{S['A']+4*i}:{S['A']+4*i+3}], v{18+2*buf+hh} offset:{i*2048}"])
        for j in range(14):
            sub, jj = j // 7, j % 7
            for p in range(2):
                off = sub * 28672 + hh * 14336 + p * 1792 + jj * 32
                r = S['B'] + 4 * j + 2 * p
                g.append([f"ds_read_b64_tr_b16 v[{r}:{r+1}], v{22+2*buf+(jj&1)} offset:{off}"])
        if 'noreads' in EXP: g = [['s_nop 0'] for _ in g]
        if 'notr' in EXP: g = [x if 'tr' not in x[0] else ['s_nop 0'] for x in g]
        return g
    def mfmas(st):
        S = SETS[st]
        m = []
        for j in range(14):
            for i in range(4):
                acc = (i * 14 + j) * 4
                m.append(f"v_mfma_f32_16x16x32_bf16 a[{acc}:{acc+3}], v[{S['B']+4*j}:{S['B']+4*j+3}], v[{S['A']+4*i}:{S['A']+4*i+3}], a[{acc}:{acc+3}]")
        if 'nomfma' in EXP: m = ['s_nop 0' for _ in m]
        return m

    for grp in dma(0):
        for x in grp: e(x)
    for x in advance(): e(x)
    for grp in dma(1):
        for x in grp: e(x)
    for x in advance(): e(x)
    for i in range(224):
        e(f"v_accvgpr_write_b32 a{i}, 0")
    e("s_waitcnt vmcnt(18)")
    e("s_barrier")
    for grp in reads(0, 0, 0):
        for x in grp: e(x)

    def tile(buf, do_dma, do_next):
        e("s_waitcnt lgkmcnt(0)")
        for x in interleave(mfmas(0), reads(buf, 1, 1), 0, 1): e(x)
        e("s_waitcnt lgkmcnt(0)")
        e("s_waitcnt vmcnt(0)")
        e("s_barrier")
        side = []
        if do_next: side += reads(buf ^ 1, 0, 0)
        if do_dma:
            d = dma(buf)
            merged = []
            rs = side;
            while rs or d:
                if rs: merged.append(rs.pop(0))
                if d: merged.append(d.pop(0))
            side = merged + [advance()]
        for x in interleave(mfmas(1), side, 0, 1): e(x)

    stamp(e, 1)
    e("s_mov_b32 s26, 0")
    e.label("K4_LOOP")
    tile(0, True, True)
    tile(1, True, True)
    e("s_add_u32 s26, s26, 1")
    e("s_cmp_lt_u32 s26, 7")
    e("s_cbranch_scc1 K4_LOOP")
    tile(0, False, True)
    tile(1, False, False)
    e.nop(16)
    stamp(e, 2)
    e(f"s_mov_b32 s40, {f32hex(-2*1.4426950408889634*0.7978845608028654*0.044715)}")
    e(f"s_mov_b32 s41, {f32hex(-2*1.4426950408889634*0.7978845608028654)}")
    e("v_and_b32 v3, 15, v1")
    e("v_lshrrev_b32 v4, 4, v1")
    e("s_lshl_b32 s3, s36, 6")
    e("v_add_u32 v3, s3, v3")
    e("v_mul_u32_u24 v3, 7168, v3")
    e("s_mul_i32 s3, s37, 224")
    e("v_lshl_add_u32 v3, v4, 3, v3")
    e("v_add_u32 v3, s3, v3")
    e("s_mul_i32 s42, s5, 128*7168")
    e("s_mul_i32 s3, s6, 448")
    e("s_add_u32 s42, s42, s3")
    for i in range(4):
        for j in range(7):
            ag = (i * 14 + j) * 4
            au = (i * 14 + 7 + j) * 4
            base = 32 + ((i * 7 + j) % 4) * 16
            for v in range(4):
                e(f"v_accvgpr_read_b32 v{base+v}, a{ag+v}")
                e(f"v_accvgpr_read_b32 v{base+4+v}, a{au+v}")
            gelu_pair(e, base, base+1, base+4, base+5, base+12, (base+8, base+9, base+10, base+11), 40, 41)
            gelu_pair(e, base+2, base+3, base+6, base+7, base+13, (base+8, base+9, base+10, base+11), 40, 41)
            e(f"buffer_store_dwordx2 v[{base+12}:{base+13}], v3, s[20:23], s42 offen offset:{j*32}")
        e(f"s_add_u32 s42, s42, {16*7168}")
    stamp(e, 3)
    stamp_flush(e, 4)
    e.label("K4_END")
    trace_end(e, 3, "K4")
    e("s_endpgm")

def add(stages, e, launches, kds, kd):
    if 'k4' in stages:
        launches.append("; @launch kernel=k4_kernel grid=(256,1,1) block=(256,1,1) lds=147456")
        gen_k4(e); kds.append(kd("k4_kernel", 480, 102, 256))
    if 'k5' in stages:
        import gemm2
        gemm2.add(stages, e, launches, kds, kd)
```

```python
from emit import f32hex
def P(r): return f"v[{r}:{r+1}]"
def padd(e, d, a, b): e(f"v_pk_add_f32 {P(d)}, {P(a)}, {P(b)}")
def psub(e, d, a, b): e(f"v_pk_add_f32 {P(d)}, {P(a)}, {P(b)} neg_lo:[0,1] neg_hi:[0,1]")
def padd_rot(e, d, a, b, sg):
    if sg < 0: e(f"v_pk_add_f32 {P(d)}, {P(a)}, {P(b)} op_sel:[0,1] op_sel_hi:[1,0] neg_hi:[0,1]")
    else:      e(f"v_pk_add_f32 {P(d)}, {P(a)}, {P(b)} op_sel:[0,1] op_sel_hi:[1,0] neg_lo:[0,1]")
def psub_rot(e, d, a, b, sg): padd_rot(e, d, a, b, -sg)
def pw8(e, d, a, sq):
    e(f"v_pk_add_f32 {P(d)}, {P(a)}, {P(a)} op_sel:[0,1] op_sel_hi:[1,0] neg_hi:[0,1]")
    e(f"v_pk_mul_f32 {P(d)}, {P(d)}, s[{sq}:{sq+1}]")
def pcmul(e, d, a, w, t, conj=False):
    e(f"v_pk_mul_f32 {P(t)}, {P(a)}, {P(w)} op_sel:[0,0] op_sel_hi:[1,0]")
    n = "neg_hi:[1,0,0]" if conj else "neg_lo:[1,0,0]"
    e(f"v_pk_fma_f32 {P(d)}, {P(a)}, {P(w)}, {P(t)} op_sel:[1,1,0] op_sel_hi:[0,1,1] {n}")
def pradix4(e, b, out, c):
    padd(e, c[0], b[0], b[2]); psub(e, c[2], b[0], b[2])
    padd(e, c[1], b[1], b[3]); psub(e, c[3], b[1], b[3])
    padd(e, out[0], c[0], c[1]); psub(e, out[2], c[0], c[1])
    padd_rot(e, out[1], c[2], c[3], -1); psub_rot(e, out[3], c[2], c[3], -1)
def pradix8(e, a, out, t, pq, c, sq):
    for i in range(4):
        padd(e, t[i], a[i], a[i+4]); psub(e, t[i+4], a[i], a[i+4])
    pradix4(e, t[0:4], [out[0], out[2], out[4], out[6]], c)
    pw8(e, pq[0], t[5], sq); pw8(e, pq[1], t[7], sq)
    padd_rot(e, c[0], t[4], t[6], -1); psub_rot(e, c[2], t[4], t[6], -1)
    padd_rot(e, c[1], pq[0], pq[1], -1); psub_rot(e, c[3], pq[0], pq[1], -1)
    padd(e, out[1], c[0], c[1]); psub(e, out[5], c[0], c[1])
    padd_rot(e, out[3], c[2], c[3], -1); psub_rot(e, out[7], c[2], c[3], -1)
def ptwiddles(e, vneg, rs, w, tmp):
    for i, r in enumerate(rs):
        src = vneg
        if r != 1:
            k = {2: "2.0", 4: "4.0"}.get(r, f32hex(float(r)))
            e(f"v_mul_f32 v{tmp+i%2}, {k}, v{vneg}")
            src = tmp + i % 2
        e(f"v_cos_f32 v{w[i]}, v{src}")
        e(f"v_sin_f32 v{w[i]+1}, v{src}")
```

```python
import os
EXP=os.environ.get('EXP','')
def trace_begin(e):
    if 'trace' not in EXP: return
    e("s_memrealtime s[96:97]")
    e("s_waitcnt lgkmcnt(0)")
def trace_end(e, kidx, tag):
    if 'trace' not in EXP: return
    e("s_mov_b64 exec, -1")
    e("s_waitcnt vmcnt(0) lgkmcnt(0)")
    e("s_memrealtime s[98:99]")
    e("s_load_dwordx2 s[90:91], s[0:1], 72")
    e("s_waitcnt lgkmcnt(0)")
    e.srd(92, 90, 0x100000, 0x6000000 + kidx * 0x10000)
    e("s_lshl_b32 s100, s2, 3")
    e("v_mov_b32 v250, s100")
    e("v_mov_b32 v252, s96")
    e("v_mov_b32 v253, s98")
    e("s_mov_b64 exec, 1")
    e("buffer_store_dwordx2 v[252:253], v250, s[92:95], 0 offen")
```

```python
import sys, os
sys.path.insert(0, 'gen')
from emit import *
import fft_kernels as F0
import fft2 as F

HEADER = open('sequential_preLN__spectral_gfnet__glu_gated_geglu__prompt.s.ref').read().split('; Override launch geometry')[0]

def kd(name, vgpr, sgpr=102, accum=None):
    if accum is None:
        accum = (vgpr + 3) // 4 * 4
    return f""".amdhsa_kernel {name}
  .amdhsa_next_free_vgpr {vgpr}
  .amdhsa_next_free_sgpr {sgpr}
  .amdhsa_accum_offset {accum}
  .amdhsa_group_segment_fixed_size 0
  .amdhsa_kernarg_size 80
  .amdhsa_user_sgpr_count 2
  .amdhsa_user_sgpr_kernarg_segment_ptr 1
  .amdhsa_system_sgpr_workgroup_id_x 1
  .amdhsa_float_denorm_mode_32 3
.end_amdhsa_kernel
"""

def build(stages):
    e = E()
    launches = []
    kds = []
    if 'k1' in stages:
        launches.append("; @launch kernel=k1_kernel grid=(464,1,1) block=(512,1,1) lds=33280")
        F.gen_k1(e); kds.append(kd("k1_kernel", 256 if "trace" in os.environ.get("EXP","") else 128))
    if 'k2' in stages:
        launches.append("; @launch kernel=k2_kernel grid=(769,1,1) block=(256,1,1) lds=32768")
        F.gen_k2(e); kds.append(kd("k2_kernel", 256 if "trace" in os.environ.get("EXP","") else 128))
    if 'k3' in stages:
        launches.append("; @launch kernel=k3_kernel grid=(320,1,1) block=(512,1,1) lds=33024")
        F.gen_k3(e); kds.append(kd("k3_kernel", 256 if "trace" in os.environ.get("EXP","") else 136))
    try:
        import gemm_kernels as G
        G.add(stages, e, launches, kds, kd)
    except ImportError:
        pass
    out = HEADER + "\n".join(launches) + "\n" + '.amdgcn_target "amdgcn-amd-amdhsa--gfx950"\n.text\n' + e.text()
    out += '.section .rodata,"a"\n.p2align 6\n' + "".join(kds)
    return out

if __name__ == "__main__":
    stages = sys.argv[2:] if len(sys.argv) > 2 else ['k1', 'k2', 'k3', 'k4', 'k5']
    open(sys.argv[1], 'w').write(build(stages))
```

```python
from trace import trace_begin, trace_end
from emit import *
from pk import *
import fft_kernels as F
from fft_kernels import XF_OFF, XF_BYTES, LN2_OFF, LN2_BYTES, X_BYTES, W_BYTES, kernel_header, stamp, stamp_flush

WT_OFF = 0x900000
WT_BYTES = 513 * 2048 * 4
A = [20 + 2*i for i in range(8)]
B = [36 + 2*i for i in range(8)]
T = [52 + 2*i for i in range(8)]
PQ = [68, 70]
C = [72, 74, 76, 78]
TW = [80 + 2*i for i in range(7)]

def pass8(e, vt, vR, rstride, tag, barrier, nthreads_log):
    e(f"v_lshlrev_b32 v5, s20, 1")
    e(f"v_add_u32 v5, -1, v5")
    e(f"v_and_b32 v6, v{vt}, v5")
    e(f"v_lshrrev_b32 v7, s20, v{vt}")
    e(f"s_add_u32 s21, s20, 3")
    e(f"v_lshlrev_b32 v7, s21, v7")
    e(f"v_add_u32 v7, v7, v6")
    e(f"v_lshl_add_u32 v7, v7, 3, v4")
    e(f"v_cvt_f32_u32 v6, v6")
    e(f"v_mul_f32 v6, s22, v6")
    ptwiddles(e, 6, range(1, 8), TW, 98)
    e(f"s_lshl_b32 s23, 8, s20")
    for r in range(1, 8):
        pcmul(e, A[r], A[r], TW[r-1], 94)
    pradix8(e, A, B, T, PQ, C, 16)
    for r in range(8):
        e(f"ds_write_b64 v7, {P(B[r])}")
        if r < 7: e(f"v_add_u32 v7, s23, v7")
    if barrier:
        e("s_waitcnt lgkmcnt(0)")
        e("s_barrier")

def ln16(e, xs_pairs, seps):
    vm, vv, vt, vr = 94, 96, 98, 99
    e(f"v_pk_add_f32 {P(vm)}, {P(xs_pairs[0])}, {P(xs_pairs[1])}")
    for p in xs_pairs[2:]:
        e(f"v_pk_add_f32 {P(vm)}, {P(vm)}, {P(p)}")
    e(f"v_add_f32 v{vm}, v{vm}, v{vm+1}")
    e.wave_sum(vm, vt, 24)
    e(f"v_mul_f32 v{vm}, {f32hex(1.0/1024)}, v{vm}")
    e(f"v_mov_b32 v{vm+1}, v{vm}")
    for i, p in enumerate(xs_pairs):
        e(f"v_pk_add_f32 {P(vt)}, {P(p)}, {P(vm)} neg_lo:[0,1] neg_hi:[0,1]")
        if i == 0: e(f"v_pk_mul_f32 {P(vv)}, {P(vt)}, {P(vt)}")
        else: e(f"v_pk_fma_f32 {P(vv)}, {P(vt)}, {P(vt)}, {P(vv)}")
    e(f"v_add_f32 v{vv}, v{vv}, v{vv+1}")
    e.wave_sum(vv, vt, 24)
    e(f"v_mul_f32 v{vv}, {f32hex(1.0/1024)}, v{vv}")
    e.bf16_round(vm)
    e(f"v_mov_b32 v{vm+1}, v{vm}")
    e.bf16_round(vv)
    e(f"v_add_f32 v{vv}, s{seps}, v{vv}")
    e.bf16_round(vv)
    e(f"v_sqrt_f32 v{vv}, v{vv}")
    e.nop(1)
    e.bf16_round(vv)
    e(f"v_rcp_f32 v{vr}, v{vv}")
    e(f"v_mov_b32 v{vv+1}, v{vv}")
    e(f"v_mov_b32 v{vt}, v{vr}")
    for p in xs_pairs:
        e(f"v_pk_add_f32 {P(p)}, {P(p)}, {P(vm)} neg_lo:[0,1] neg_hi:[0,1]")
        e(f"v_cvt_pk_bf16_f32 v{p}, v{p}, v{p+1}")
        e(f"v_and_b32 v{p+1}, 0xffff0000, v{p}")
        e(f"v_lshlrev_b32 v{p}, 16, v{p}")
        e(f"v_pk_mul_f32 {P(100)}, {P(p)}, {P(vt)}")
        e(f"v_pk_fma_f32 {P(102)}, {P(100)}, {P(vv)}, {P(p)} neg_lo:[1,0,0] neg_hi:[1,0,0]")
        e(f"v_pk_fma_f32 {P(p)}, {P(102)}, {P(vt)}, {P(100)}")

def fft512_loop(e, tag):
    e("s_mov_b32 s20, 0")
    e(f"s_mov_b32 s22, {f32hex(-1.0/8)}")
    e.label(f"{tag}_PASS")
    pass8(e, 1, None, 512, tag, False, 6)
    e("s_cmp_eq_u32 s20, 6")
    e(f"s_cbranch_scc1 {tag}_PASSDONE")
    for r in range(8):
        e(f"ds_read_b64 {P(A[r])}, v3 offset:{512*r}")
    e("s_add_u32 s20, s20, 3")
    e(f"v_mul_f32 v6, {f32hex(0.125)}, v6") if False else None
    e("s_sub_u32 s22, s22, 0x01800000")
    e("s_waitcnt lgkmcnt(0)")
    e(f"s_branch {tag}_PASS")
    e.label(f"{tag}_PASSDONE")

def gen_k1(e):
    kernel_header(e, "k1_kernel")
    trace_begin(e)
    e("s_cmp_ge_u32 s2, 256")
    e("s_cbranch_scc1 K1_WT")
    e("s_load_dwordx2 s[4:5], s[0:1], 0")
    e("s_load_dwordx2 s[6:7], s[0:1], 72")
    e("v_and_b32 v1, 63, v0")
    e("v_lshrrev_b32 v2, 6, v0")
    e("s_lshl_b32 s18, s2, 14")
    e("v_lshlrev_b32 v3, 11, v2")
    e("v_lshl_add_u32 v3, v1, 2, v3")
    e("s_waitcnt lgkmcnt(0)")
    e.srd(8, 4, X_BYTES)
    for r in range(8):
        e(f"buffer_load_dword v{10+r}, v3, s[8:11], s18 offen offset:{256*r}")
    e.srd(12, 6, XF_BYTES, XF_OFF)
    e(f"s_mov_b32 s16, {SQH}")
    e(f"s_mov_b32 s17, {SQH}")
    e(f"s_mov_b32 s19, {f32hex(1e-5)}")
    e("v_mul_u32_u24 v4, 4128, v2")
    e("v_lshl_add_u32 v3, v1, 3, v4")
    e("s_waitcnt vmcnt(0)")
    for r in range(8):
        e(f"v_lshlrev_b32 v{A[r]}, 16, v{10+r}")
        e(f"v_and_b32 v{A[r]+1}, 0xffff0000, v{10+r}")
    ln16(e, A, 19)
    for p in A:
        e(f"v_cvt_pk_bf16_f32 v{p}, v{p}, v{p+1}")
        e(f"v_and_b32 v{p+1}, 0xffff0000, v{p}")
        e(f"v_lshlrev_b32 v{p}, 16, v{p}")
    fft512_loop(e, "K1")
    e("s_waitcnt lgkmcnt(0)")
    e("s_barrier")
    e("v_and_b32 v2, 7, v0")
    e("v_lshrrev_b32 v6, 3, v0")
    e("v_mul_u32_u24 v4, 4128, v2")
    e("s_lshl_b32 s18, s2, 6")
    e("v_lshlrev_b32 v5, 3, v2")
    e("v_add_u32 v5, s18, v5")
    e("s_mov_b32 s20, 0")
    e.label("K1_POST")
    e("v_sub_u32 v7, 512, v6")
    e("v_and_b32 v9, 511, v7")
    e("v_lshl_add_u32 v8, v6, 3, v4")
    e("v_lshl_add_u32 v9, v9, 3, v4")
    e("ds_read_b64 v[20:21], v8")
    e("ds_read_b64 v[22:23], v9")
    e("v_cvt_f32_u32 v60, v6")
    e(f"v_mul_f32 v60, {f32hex(-1.0/1024)}, v60")
    e("v_cos_f32 v62, v60")
    e("v_sin_f32 v63, v60")
    e("v_lshl_add_u32 v8, v6, 14, v5")
    e("v_lshl_add_u32 v9, v7, 14, v5")
    e("s_waitcnt lgkmcnt(0)")
    e("v_pk_add_f32 v[50:51], v[20:21], v[22:23] neg_hi:[0,1]")
    e("v_pk_add_f32 v[52:53], v[20:21], v[22:23] op_sel:[1,1] op_sel_hi:[0,0] neg_hi:[1,0]")
    pcmul(e, 54, 52, 62, 56)
    e("v_pk_add_f32 v[56:57], v[50:51], v[54:55]")
    e("v_pk_add_f32 v[58:59], v[50:51], v[54:55] neg_lo:[0,1] neg_hi:[1,0]")
    e("buffer_store_dwordx2 v[56:57], v8, s[12:15], 0 offen")
    e("buffer_store_dwordx2 v[58:59], v9, s[12:15], 0 offen")
    e("v_add_u32 v6, 64, v6")
    e("s_add_u32 s20, s20, 1")
    e("s_cmp_lt_u32 s20, 4")
    e("s_cbranch_scc1 K1_POST")
    e("s_cmp_eq_u32 s20, 5")
    e("s_cbranch_scc1 K1_END")
    e("v_cmp_gt_u32 vcc, 8, v0")
    e("s_and_saveexec_b64 s[28:29], vcc")
    e("s_cbranch_execnz K1_POST")
    e.label("K1_END")
    trace_end(e, 0, "K1")
    e("s_endpgm")
    e.label("K1_WT")
    e("s_cmp_ge_u32 s2, 400")
    e("s_cbranch_scc1 K1_END")
    e("s_load_dwordx4 s[4:7], s[0:1], 8")
    e("s_load_dwordx2 s[28:29], s[0:1], 72")
    e("s_sub_u32 s3, s2, 256")
    e("s_lshr_b32 s18, s3, 4")
    e("s_and_b32 s19, s3, 15")
    e("v_and_b32 v1, 63, v0")
    e("v_lshrrev_b32 v2, 6, v0")
    e("s_lshl_b32 s20, s18, 7")
    e("s_mul_i32 s21, s19, 128*1026")
    e("s_add_u32 s20, s20, s21")
    e("v_mul_u32_u24 v3, 16*1026, v2")
    e("v_lshl_add_u32 v3, v1, 1, v3")
    e("s_waitcnt lgkmcnt(0)")
    e.srd(8, 4, W_BYTES)
    e.srd(32, 6, W_BYTES)
    e.srd(12, 28, WT_BYTES, WT_OFF)
    for r in range(16):
        e(f"s_add_u32 s22, s20, {1026*r}")
        e(f"buffer_load_ushort v{20+r}, v3, s[8:11], s22 offen")
        e(f"buffer_load_ushort v{40+r}, v3, s[32:35], s22 offen")
    e("v_mul_u32_u24 v4, 520, v1")
    e("v_lshl_add_u32 v4, v2, 6, v4")
    e("s_waitcnt vmcnt(0)")
    for r in range(16):
        e(f"v_lshl_or_b32 v{20+r}, v{40+r}, 16, v{20+r}")
        e(f"ds_write_b32 v4, v{20+r} offset:{4*r}")
    e("s_waitcnt lgkmcnt(0)")
    e("s_barrier")
    e("v_mul_u32_u24 v4, 8*520, v2")
    e("v_lshl_add_u32 v4, v1, 3, v4")
    e("v_lshlrev_b32 v5, 16, v2")
    e("v_lshl_add_u32 v5, v1, 3, v5")
    e("s_lshl_b32 s20, s18, 19")
    e("s_lshl_b32 s21, s19, 9")
    e("s_add_u32 s20, s20, s21")
    for r in range(8):
        e(f"ds_read_b64 v[{20+2*r}:{21+2*r}], v4 offset:{520*r}")
    e("s_waitcnt lgkmcnt(0)")
    for r in range(8):
        e(f"s_add_u32 s22, s20, {8192*r}")
        e(f"buffer_store_dwordx2 v[{20+2*r}:{21+2*r}], v5, s[12:15], s22 offen")
    e("s_endpgm")

def gen_k2(e):
    kernel_header(e, "k2_kernel")
    trace_begin(e)
    e("s_cmp_lt_u32 s2, 512")
    e("s_cbranch_scc1 K2_PF")
    e("s_sub_u32 s2, s2, 512")
    e("s_cmp_ge_u32 s2, 513")
    e("s_cbranch_scc1 K2_PFEND")
    stamp(e, 0)
    if 'twice' in F.EXP:
        e("s_mov_b32 s89, 0")
        e.label("K2_AGAIN")
    e("s_load_dwordx2 s[28:29], s[0:1], 72")
    e("v_lshlrev_b32 v1, 3, v0")
    e("s_lshl_b32 s30, s2, 14")
    e("v_lshlrev_b32 v2, 2, v0")
    e("s_lshl_b32 s18, s2, 13")
    e("s_waitcnt lgkmcnt(0)")
    e.srd(12, 28, XF_BYTES, XF_OFF)
    for q in range(8):
        e(f"s_add_u32 s{40+q}, s30, {2048*q}")
        e(f"buffer_load_dwordx2 {P(A[q])}, v1, s[12:15], s{40+q} offen")
    e.srd(8, 28, WT_BYTES, WT_OFF)
    WV = [104 + 2*q for q in range(8)]
    for q in range(8):
        e(f"buffer_load_dword v{WV[q]}, v2, s[8:11], s18 offen offset:{1024*q if q < 4 else 0}") if q < 4 else (
            e(f"s_add_u32 s31, s18, {1024*q}"), e(f"buffer_load_dword v{WV[q]}, v2, s[8:11], s31 offen"))
    e(f"s_mov_b32 s16, {SQH}")
    e(f"s_mov_b32 s17, {SQH}")
    e(f"s_mov_b32 s36, {f32hex(2.0**-22)}")
    e(f"s_mov_b32 s37, {f32hex(-2.0**-22)}")
    e("s_mov_b32 s38, 0")
    e("v_mov_b32 v4, 0")
    e("v_mov_b32 v3, v1")
    e("s_waitcnt vmcnt(8)")
    stamp(e, 1)
    e.label("K2_FFT")
    e("s_mov_b32 s20, 0")
    e(f"s_mov_b32 s22, {f32hex(-1.0/8)}")
    e.label("K2_PASS")
    pass8(e, 0, None, 2048, "K2", True, 8)
    for r in range(8):
        e(f"ds_read_b64 {P(A[r])}, v3 offset:{2048*r}")
    e("v_xor_b32 v3, 0x4000, v3")
    e("v_xor_b32 v4, 0x4000, v4")
    e("s_add_u32 s20, s20, 3")
    e("s_sub_u32 s22, s22, 0x01800000")
    e("s_cmp_lt_u32 s20, 9")
    e("s_waitcnt lgkmcnt(0)")
    e("s_cbranch_scc1 K2_PASS")
    e("v_cvt_f32_u32 v6, v0")
    e(f"v_mul_f32 v6, {f32hex(-1.0/2048)}, v6")
    ptwiddles(e, 6, range(1, 4), TW[0:3], 98)
    e(f"v_add_f32 v6, {f32hex(-0.125)}, v6")
    ptwiddles(e, 6, range(1, 4), TW[3:6], 98)
    for h in range(2):
        for r in range(1, 4):
            pcmul(e, A[2*r+h], A[2*r+h], TW[3*h+r-1], 94)
        pradix4(e, [A[h], A[2+h], A[4+h], A[6+h]], [B[h], B[2+h], B[4+h], B[6+h]], C)
    e("s_cmp_eq_u32 s38, 1")
    e("s_cbranch_scc1 K2_STORE")
    e("s_waitcnt vmcnt(0)")
    for q in range(8):
        e(f"v_and_b32 v{WV[q]+1}, 0xffff0000, v{WV[q]}")
        e(f"v_lshlrev_b32 v{WV[q]}, 16, v{WV[q]}")
        pcmul(e, B[q], B[q], WV[q], 94)
        e(f"v_pk_mul_f32 {P(A[q])}, {P(B[q])}, s[36:37]")
    e("s_mov_b32 s38, 1")
    e("s_branch K2_FFT")
    e.label("K2_STORE")
    for q in range(8):
        e(f"buffer_store_dwordx2 {P(B[q])}, v1, s[12:15], s{40+q} offen")
    if 'twice' in F.EXP:
        e("s_cmp_eq_u32 s89, 1")
        e("s_cbranch_scc1 K2_FIN")
        stamp(e, 2)
        e("s_mov_b32 s89, 1")
        e("s_waitcnt vmcnt(0)")
        e("s_barrier")
        e("s_branch K2_AGAIN")
        e.label("K2_FIN")
        stamp(e, 3)
        stamp_flush(e, 4, "K2")
    else:
        stamp(e, 2)
        stamp_flush(e, 3, "K2")
    e.label("K2_END")
    trace_end(e, 1, "K2")
    e("s_endpgm")
    e.label("K2_PF")
    e("s_load_dwordx4 s[4:7], s[0:1], 32")
    e("s_load_dwordx2 s[24:25], s[0:1], 48")
    e("s_lshr_b32 s3, s2, 3")
    e("s_and_b32 s17, s2, 7")
    e("s_lshr_b32 s18, s17, 1")
    e("s_mul_i32 s18, s18, 1792")
    e("s_mul_i32 s19, s3, 16*7168")
    e("s_add_u32 s18, s18, s19")
    e("v_cmp_gt_u32 vcc, 112, v0")
    e("v_mov_b32 v2, 7168-1792")
    e.nop(1)
    e("v_cndmask_b32 v2, v2, 0, vcc")
    e("v_lshl_add_u32 v1, v0, 4, v2")
    e("s_mul_i32 s19, s3, 56")
    e("s_and_b32 s20, s17, 3")
    e("s_mul_i32 s20, s20, 14")
    e("s_add_u32 s19, s19, s20")
    e("s_lshl_b32 s19, s19, 11")
    e("s_lshr_b32 s20, s17, 2")
    e("s_lshl_b32 s20, s20, 10")
    e("s_add_u32 s19, s19, s20")
    e("v_lshrrev_b32 v3, 6, v0")
    e("v_and_b32 v4, 63, v0")
    e("v_lshlrev_b32 v4, 4, v4")
    e("v_lshl_add_u32 v3, v3, 11, v4")
    e("s_waitcnt lgkmcnt(0)")
    e.srd(8, 4, 1024*3584*2)
    e.srd(12, 6, 1024*3584*2)
    e.srd(28, 24, 3584*1024*2)
    for i in range(4):
        e(f"s_add_u32 s23, s19, {i*4*2048}")
        e(f"buffer_load_dwordx4 v[{80+4*i}:{83+4*i}], v3, s[28:31], s23 offen")
    e("v_cmp_gt_u32 vcc, 224, v0")
    e("s_and_saveexec_b64 s[20:21], vcc")
    e("s_cbranch_execz K2_PFEND")
    for i in range(8):
        e(f"s_add_u32 s23, s18, {i*2*7168}")
        e(f"buffer_load_dwordx4 v[{8+8*i}:{11+8*i}], v1, s[8:11], s23 offen")
        e(f"buffer_load_dwordx4 v[{12+8*i}:{15+8*i}], v1, s[12:15], s23 offen")
    e.label("K2_PFEND")
    e("s_endpgm")

def gen_k3(e):
    kernel_header(e, "k3_kernel")
    trace_begin(e)
    e("s_cmp_ge_u32 s2, 256")
    e("s_cbranch_scc1 K3_PF")
    e("s_load_dwordx2 s[4:5], s[0:1], 0")
    e("s_load_dwordx2 s[6:7], s[0:1], 72")
    e("s_load_dwordx2 s[28:29], s[0:1], 56")
    e("v_and_b32 v1, 63, v0")
    e("v_lshrrev_b32 v2, 6, v0")
    e("v_and_b32 v10, 7, v0")
    e("v_lshrrev_b32 v6, 3, v0")
    e("v_mul_u32_u24 v12, 4128, v10")
    e("s_lshl_b32 s18, s2, 6")
    e("v_lshlrev_b32 v13, 3, v10")
    e("v_add_u32 v13, s18, v13")
    e("s_waitcnt lgkmcnt(0)")
    e.srd(12, 6, XF_BYTES, XF_OFF)
    for i in range(5):
        e(f"v_add_u32 v7, {64*i}, v6")
        if i == 4: e("v_min_u32 v7, 256, v7")
        e("v_sub_u32 v8, 512, v7")
        e("v_lshl_add_u32 v7, v7, 14, v13")
        e("v_lshl_add_u32 v8, v8, 14, v13")
        e(f"buffer_load_dwordx2 v[{104+4*i}:{105+4*i}], v7, s[12:15], 0 offen")
        e(f"buffer_load_dwordx2 v[{106+4*i}:{107+4*i}], v8, s[12:15], 0 offen")
    e.srd(8, 4, X_BYTES)
    e("s_lshl_b32 s31, s2, 14")
    e("v_lshlrev_b32 v15, 11, v2")
    e("v_lshl_add_u32 v15, v1, 2, v15")
    for r in range(8):
        e(f"buffer_load_dword v{124+r}, v15, s[8:11], s31 offen offset:{256*r}")
    e.srd(32, 28, X_BYTES)
    e.srd(36, 6, LN2_BYTES, LN2_OFF)
    e(f"s_mov_b32 s16, {SQH}")
    e(f"s_mov_b32 s17, {SQH}")
    e(f"s_mov_b32 s19, {f32hex(1e-5)}")
    e("v_cmp_eq_u32 vcc, 0, v6")
    e("v_mov_b32 v60, 0")
    e("s_waitcnt vmcnt(8)")
    e("v_cndmask_b32 v105, v105, v60, vcc")
    e("v_cndmask_b32 v107, v107, v60, vcc")
    for i in range(5):
        y1, y2 = 104 + 4*i, 106 + 4*i
        if i == 4:
            e("v_cmp_gt_u32 vcc, 8, v0")
            e("s_and_saveexec_b64 s[24:25], vcc")
            e("s_cbranch_execz K3_SKIP")
        e(f"v_add_u32 v7, {64*i}, v6")
        e("v_cvt_f32_u32 v60, v7")
        e(f"v_mul_f32 v60, {f32hex(-1.0/1024)}, v60")
        e("v_cos_f32 v62, v60")
        e("v_sin_f32 v63, v60")
        e(f"v_pk_add_f32 v[50:51], {P(y1)}, {P(y2)} neg_hi:[0,1]")
        e(f"v_pk_add_f32 v[52:53], {P(y1)}, {P(y2)} neg_lo:[0,1]")
        pcmul(e, 54, 52, 62, 56)
        padd_rot(e, 56, 50, 54, -1)
        e("v_pk_add_f32 v[58:59], v[50:51], v[54:55] op_sel:[0,1] op_sel_hi:[1,0] neg_lo:[0,1] neg_hi:[1,1]")
        e("v_sub_u32 v8, 512, v7")
        e("v_and_b32 v8, 511, v8")
        e("v_lshl_add_u32 v7, v7, 3, v12")
        e("v_lshl_add_u32 v8, v8, 3, v12")
        e("ds_write_b64 v7, v[56:57]")
        e("ds_write_b64 v8, v[58:59]")
    e.label("K3_SKIP")
    e("s_mov_b64 exec, -1")
    e("v_mul_u32_u24 v4, 4128, v2")
    e("v_lshl_add_u32 v3, v1, 3, v4")
    e("s_waitcnt lgkmcnt(0)")
    e("s_barrier")
    for r in range(8):
        e(f"ds_read_b64 {P(A[r])}, v3 offset:{512*r}")
    e("s_waitcnt lgkmcnt(0)")
    fft512_loop(e, "K3")
    e("s_waitcnt vmcnt(0)")
    for r in range(8):
        e(f"v_cvt_pk_bf16_f32 v{B[r]}, v{B[r]}, -v{B[r]+1}")
        e(f"v_and_b32 v{B[r]+1}, 0xffff0000, v{B[r]}")
        e(f"v_lshlrev_b32 v{B[r]}, 16, v{B[r]}")
        e(f"v_lshlrev_b32 v94, 16, v{124+r}")
        e(f"v_and_b32 v95, 0xffff0000, v{124+r}")
        e(f"v_pk_add_f32 {P(B[r])}, {P(B[r])}, v[94:95]")
        e(f"v_cvt_pk_bf16_f32 v{104+r}, v{B[r]}, v{B[r]+1}")
        e(f"buffer_store_dword v{104+r}, v15, s[32:35], s31 offen offset:{256*r}")
        e(f"v_lshlrev_b32 v{B[r]}, 16, v{104+r}")
        e(f"v_and_b32 v{B[r]+1}, 0xffff0000, v{104+r}")
    ln16(e, B, 19)
    for r in range(8):
        e(f"v_cvt_pk_bf16_f32 v{20+r}, v{B[r]}, v{B[r]+1}")
        e(f"buffer_store_dword v{20+r}, v15, s[36:39], s31 offen offset:{256*r}")
    e.label("K3_END")
    trace_end(e, 2, "K3")
    e("s_endpgm")
    e.label("K3_PF")
    e.label("K3_PFEND")
    e("s_endpgm")
```

```python
from trace import trace_begin, trace_end
from emit import *
from pk import *
import fft_kernels as F
from fft_kernels import XF_OFF, XF_BYTES, LN2_OFF, LN2_BYTES, X_BYTES, W_BYTES, kernel_header, stamp, stamp_flush

WT_OFF = 0x900000
WT_BYTES = 513 * 2048 * 4
A = [20 + 2*i for i in range(8)]
B = [36 + 2*i for i in range(8)]
T = [52 + 2*i for i in range(8)]
PQ = [68, 70]
C = [72, 74, 76, 78]
TW = [80 + 2*i for i in range(7)]

PF1 = (0, 32); PF2 = (32, 512); PF3 = (512, 512)
def gen_pf(e, tag, first_wg, p0, p1, wide):
    e.label(f"{tag}_PF")
    n = (p1 - p0) // (2 if wide else 1)
    e(f"s_cmp_ge_u32 s2, {first_wg + n}")
    e(f"s_cbranch_scc1 {tag}_PFEND")
    e("s_and_b32 s17, s2, 7")
    e(f"s_sub_u32 s2, s2, {first_wg}")
    e("s_lshr_b32 s3, s2, 3")
    if wide:
        e("v_lshrrev_b32 v5, 8, v0")
        e.nop(1)
        e("v_readfirstlane_b32 s26, v5")
        e("v_and_b32 v0, 255, v0")
        e("s_lshl_b32 s3, s3, 1")
        e("s_add_u32 s3, s3, s26")
    e(f"s_add_u32 s3, s3, {p0 // 8}")
    e("s_load_dwordx4 s[4:7], s[0:1], 32")
    e("s_load_dwordx2 s[24:25], s[0:1], 48")
    e("s_lshr_b32 s18, s17, 1")
    e("s_mul_i32 s18, s18, 1792")
    e("s_mul_i32 s19, s3, 16*7168")
    e("s_add_u32 s18, s18, s19")
    e("v_cmp_gt_u32 vcc, 112, v0")
    e("v_mov_b32 v2, 7168-1792")
    e.nop(1)
    e("v_cndmask_b32 v2, v2, 0, vcc")
    e("v_lshl_add_u32 v1, v0, 4, v2")
    e("s_mul_i32 s19, s3, 56")
    e("s_and_b32 s20, s17, 3")
    e("s_mul_i32 s20, s20, 14")
    e("s_add_u32 s19, s19, s20")
    e("s_lshl_b32 s19, s19, 11")
    e("s_lshr_b32 s20, s17, 2")
    e("s_lshl_b32 s20, s20, 10")
    e("s_add_u32 s19, s19, s20")
    e("v_lshrrev_b32 v3, 6, v0")
    e("v_and_b32 v4, 63, v0")
    e("v_lshlrev_b32 v4, 4, v4")
    e("v_lshl_add_u32 v3, v3, 11, v4")
    e("s_waitcnt lgkmcnt(0)")
    e.srd(8, 4, 1024*3584*2)
    e.srd(12, 6, 1024*3584*2)
    e.srd(28, 24, 3584*1024*2)
    for i in range(4):
        e(f"s_add_u32 s23, s19, {i*4*2048}")
        e(f"buffer_load_dwordx4 v[{80+4*i}:{83+4*i}], v3, s[28:31], s23 offen")
    e("v_cmp_gt_u32 vcc, 224, v0")
    e("s_and_saveexec_b64 s[20:21], vcc")
    e(f"s_cbranch_execz {tag}_PFEND")
    for i in range(8):
        e(f"s_add_u32 s23, s18, {i*2*7168}")
        e(f"buffer_load_dwordx4 v[{8+8*i}:{11+8*i}], v1, s[8:11], s23 offen")
        e(f"buffer_load_dwordx4 v[{12+8*i}:{15+8*i}], v1, s[12:15], s23 offen")
    e.label(f"{tag}_PFEND")
    trace_end(e, {"K1":0,"K2":1,"K3":2}[tag], tag)
    e("s_endpgm")

def pass8(e, vt, vR, rstride, tag, barrier, nthreads_log):
    e(f"v_lshlrev_b32 v5, s20, 1")
    e(f"v_add_u32 v5, -1, v5")
    e(f"v_and_b32 v6, v{vt}, v5")
    e(f"v_lshrrev_b32 v7, s20, v{vt}")
    e(f"s_add_u32 s21, s20, 3")
    e(f"v_lshlrev_b32 v7, s21, v7")
    e(f"v_add_u32 v7, v7, v6")
    e(f"v_lshl_add_u32 v7, v7, 3, v4")
    e(f"v_cvt_f32_u32 v6, v6")
    e(f"v_mul_f32 v6, s22, v6")
    ptwiddles(e, 6, range(1, 8), TW, 98)
    e(f"s_lshl_b32 s23, 8, s20")
    for r in range(1, 8):
        pcmul(e, A[r], A[r], TW[r-1], 94)
    pradix8(e, A, B, T, PQ, C, 16)
    for r in range(8):
        e(f"ds_write_b64 v7, {P(B[r])}")
        if r < 7: e(f"v_add_u32 v7, s23, v7")
    if barrier:
        e("s_waitcnt lgkmcnt(0)")
        e("s_barrier")

def ln16(e, xs_pairs, seps):
    vm, vv, vt, vr = 94, 96, 98, 99
    e(f"v_pk_add_f32 {P(vm)}, {P(xs_pairs[0])}, {P(xs_pairs[1])}")
    for p in xs_pairs[2:]:
        e(f"v_pk_add_f32 {P(vm)}, {P(vm)}, {P(p)}")
    e(f"v_add_f32 v{vm}, v{vm}, v{vm+1}")
    e.wave_sum(vm, vt, 24)
    e(f"v_mul_f32 v{vm}, {f32hex(1.0/1024)}, v{vm}")
    e(f"v_mov_b32 v{vm+1}, v{vm}")
    for i, p in enumerate(xs_pairs):
        e(f"v_pk_add_f32 {P(vt)}, {P(p)}, {P(vm)} neg_lo:[0,1] neg_hi:[0,1]")
        if i == 0: e(f"v_pk_mul_f32 {P(vv)}, {P(vt)}, {P(vt)}")
        else: e(f"v_pk_fma_f32 {P(vv)}, {P(vt)}, {P(vt)}, {P(vv)}")
    e(f"v_add_f32 v{vv}, v{vv}, v{vv+1}")
    e.wave_sum(vv, vt, 24)
    e(f"v_mul_f32 v{vv}, {f32hex(1.0/1024)}, v{vv}")
    e.bf16_round(vm)
    e(f"v_mov_b32 v{vm+1}, v{vm}")
    e.bf16_round(vv)
    e(f"v_add_f32 v{vv}, s{seps}, v{vv}")
    e.bf16_round(vv)
    e(f"v_sqrt_f32 v{vv}, v{vv}")
    e.nop(1)
    e.bf16_round(vv)
    e(f"v_rcp_f32 v{vr}, v{vv}")
    e(f"v_mov_b32 v{vv+1}, v{vv}")
    e(f"v_mov_b32 v{vt}, v{vr}")
    for p in xs_pairs:
        e(f"v_pk_add_f32 {P(p)}, {P(p)}, {P(vm)} neg_lo:[0,1] neg_hi:[0,1]")
        e(f"v_cvt_pk_bf16_f32 v{p}, v{p}, v{p+1}")
        e(f"v_and_b32 v{p+1}, 0xffff0000, v{p}")
        e(f"v_lshlrev_b32 v{p}, 16, v{p}")
        e(f"v_pk_mul_f32 {P(100)}, {P(p)}, {P(vt)}")
        e(f"v_pk_fma_f32 {P(102)}, {P(100)}, {P(vv)}, {P(p)} neg_lo:[1,0,0] neg_hi:[1,0,0]")
        e(f"v_pk_fma_f32 {P(p)}, {P(102)}, {P(vt)}, {P(100)}")

def fft512_loop(e, tag):
    e("s_mov_b32 s20, 0")
    e(f"s_mov_b32 s22, {f32hex(-1.0/8)}")
    e.label(f"{tag}_PASS")
    pass8(e, 1, None, 512, tag, False, 6)
    e("s_cmp_eq_u32 s20, 6")
    e(f"s_cbranch_scc1 {tag}_PASSDONE")
    for r in range(8):
        e(f"ds_read_b64 {P(A[r])}, v3 offset:{512*r}")
    e("s_add_u32 s20, s20, 3")
    e(f"v_mul_f32 v6, {f32hex(0.125)}, v6") if False else None
    e("s_sub_u32 s22, s22, 0x01800000")
    e("s_waitcnt lgkmcnt(0)")
    e(f"s_branch {tag}_PASS")
    e.label(f"{tag}_PASSDONE")

def gen_k1(e):
    kernel_header(e, "k1_kernel")
    trace_begin(e)
    e("s_cmp_ge_u32 s2, 256")
    e("s_cbranch_scc1 K1_WT")
    e("s_load_dwordx2 s[4:5], s[0:1], 0")
    e("s_load_dwordx2 s[6:7], s[0:1], 72")
    e("v_and_b32 v1, 63, v0")
    e("v_lshrrev_b32 v2, 6, v0")
    e("s_lshl_b32 s18, s2, 14")
    e("v_lshlrev_b32 v3, 11, v2")
    e("v_lshl_add_u32 v3, v1, 2, v3")
    e("s_waitcnt lgkmcnt(0)")
    e.srd(8, 4, X_BYTES)
    for r in range(8):
        e(f"buffer_load_dword v{10+r}, v3, s[8:11], s18 offen offset:{256*r}")
    e.srd(12, 6, XF_BYTES, XF_OFF)
    e(f"s_mov_b32 s16, {SQH}")
    e(f"s_mov_b32 s17, {SQH}")
    e(f"s_mov_b32 s19, {f32hex(1e-5)}")
    e("v_mul_u32_u24 v4, 4128, v2")
    e("v_lshl_add_u32 v3, v1, 3, v4")
    e("s_waitcnt vmcnt(0)")
    for r in range(8):
        e(f"v_lshlrev_b32 v{A[r]}, 16, v{10+r}")
        e(f"v_and_b32 v{A[r]+1}, 0xffff0000, v{10+r}")
    ln16(e, A, 19)
    for p in A:
        e(f"v_cvt_pk_bf16_f32 v{p}, v{p}, v{p+1}")
        e(f"v_and_b32 v{p+1}, 0xffff0000, v{p}")
        e(f"v_lshlrev_b32 v{p}, 16, v{p}")
    fft512_loop(e, "K1")
    e("s_waitcnt lgkmcnt(0)")
    e("s_barrier")
    e("v_and_b32 v2, 7, v0")
    e("v_lshrrev_b32 v6, 3, v0")
    e("v_mul_u32_u24 v4, 4128, v2")
    e("s_lshl_b32 s18, s2, 6")
    e("v_lshlrev_b32 v5, 3, v2")
    e("v_add_u32 v5, s18, v5")
    e("s_mov_b32 s20, 0")
    e.label("K1_POST")
    e("v_sub_u32 v7, 512, v6")
    e("v_and_b32 v9, 511, v7")
    e("v_lshl_add_u32 v8, v6, 3, v4")
    e("v_lshl_add_u32 v9, v9, 3, v4")
    e("ds_read_b64 v[20:21], v8")
    e("ds_read_b64 v[22:23], v9")
    e("v_cvt_f32_u32 v60, v6")
    e(f"v_mul_f32 v60, {f32hex(-1.0/1024)}, v60")
    e("v_cos_f32 v62, v60")
    e("v_sin_f32 v63, v60")
    e("v_lshl_add_u32 v8, v6, 14, v5")
    e("v_lshl_add_u32 v9, v7, 14, v5")
    e("s_waitcnt lgkmcnt(0)")
    e("v_pk_add_f32 v[50:51], v[20:21], v[22:23] neg_hi:[0,1]")
    e("v_pk_add_f32 v[52:53], v[20:21], v[22:23] op_sel:[1,1] op_sel_hi:[0,0] neg_hi:[1,0]")
    pcmul(e, 54, 52, 62, 56)
    e("v_pk_add_f32 v[56:57], v[50:51], v[54:55]")
    e("v_pk_add_f32 v[58:59], v[50:51], v[54:55] neg_lo:[0,1] neg_hi:[1,0]")
    e("buffer_store_dwordx2 v[56:57], v8, s[12:15], 0 offen")
    e("buffer_store_dwordx2 v[58:59], v9, s[12:15], 0 offen")
    e("v_add_u32 v6, 64, v6")
    e("s_add_u32 s20, s20, 1")
    e("s_cmp_lt_u32 s20, 4")
    e("s_cbranch_scc1 K1_POST")
    e("s_cmp_eq_u32 s20, 5")
    e("s_cbranch_scc1 K1_END")
    e("v_cmp_gt_u32 vcc, 8, v0")
    e("s_and_saveexec_b64 s[28:29], vcc")
    e("s_cbranch_execnz K1_POST")
    e.label("K1_END")
    trace_end(e, 0, "K1")
    e("s_endpgm")
    e.label("K1_WT")
    e("s_cmp_ge_u32 s2, 400")
    e("s_cbranch_scc1 K1_PF")
    e("s_load_dwordx4 s[4:7], s[0:1], 8")
    e("s_load_dwordx2 s[28:29], s[0:1], 72")
    e("s_sub_u32 s3, s2, 256")
    e("s_lshr_b32 s18, s3, 4")
    e("s_and_b32 s19, s3, 15")
    e("v_and_b32 v1, 63, v0")
    e("v_lshrrev_b32 v2, 6, v0")
    e("s_lshl_b32 s20, s18, 7")
    e("s_mul_i32 s21, s19, 128*1026")
    e("s_add_u32 s20, s20, s21")
    e("v_mul_u32_u24 v3, 16*1026, v2")
    e("v_lshl_add_u32 v3, v1, 1, v3")
    e("s_waitcnt lgkmcnt(0)")
    e.srd(8, 4, W_BYTES)
    e.srd(32, 6, W_BYTES)
    e.srd(12, 28, WT_BYTES, WT_OFF)
    for r in range(16):
        e(f"s_add_u32 s22, s20, {1026*r}")
        e(f"buffer_load_ushort v{20+r}, v3, s[8:11], s22 offen")
        e(f"buffer_load_ushort v{40+r}, v3, s[32:35], s22 offen")
    e("v_mul_u32_u24 v4, 520, v1")
    e("v_lshl_add_u32 v4, v2, 6, v4")
    e("s_waitcnt vmcnt(0)")
    for r in range(16):
        e(f"v_lshl_or_b32 v{20+r}, v{40+r}, 16, v{20+r}")
        e(f"ds_write_b32 v4, v{20+r} offset:{4*r}")
    e("s_waitcnt lgkmcnt(0)")
    e("s_barrier")
    e("v_mul_u32_u24 v4, 8*520, v2")
    e("v_lshl_add_u32 v4, v1, 3, v4")
    e("v_lshlrev_b32 v5, 16, v2")
    e("v_lshl_add_u32 v5, v1, 3, v5")
    e("s_lshl_b32 s20, s18, 19")
    e("s_lshl_b32 s21, s19, 9")
    e("s_add_u32 s20, s20, s21")
    for r in range(8):
        e(f"ds_read_b64 v[{20+2*r}:{21+2*r}], v4 offset:{520*r}")
    e("s_waitcnt lgkmcnt(0)")
    for r in range(8):
        e(f"s_add_u32 s22, s20, {8192*r}")
        e(f"buffer_store_dwordx2 v[{20+2*r}:{21+2*r}], v5, s[12:15], s22 offen")
    trace_end(e, 0, "K1")
    e("s_endpgm")
    gen_pf(e, "K1", 400, PF1[0], PF1[1], True)

def gen_k2(e):
    kernel_header(e, "k2_kernel")
    trace_begin(e)
    e("s_cmp_ge_u32 s2, 513")
    e("s_cbranch_scc1 K2_PF")
    stamp(e, 0)
    if 'twice' in F.EXP:
        e("s_mov_b32 s89, 0")
        e.label("K2_AGAIN")
    e("s_load_dwordx2 s[28:29], s[0:1], 72")
    e("v_lshlrev_b32 v1, 3, v0")
    e("s_lshl_b32 s30, s2, 14")
    e("v_lshlrev_b32 v2, 2, v0")
    e("s_lshl_b32 s18, s2, 13")
    e("s_waitcnt lgkmcnt(0)")
    e.srd(12, 28, XF_BYTES, XF_OFF)
    for q in range(8):
        e(f"s_add_u32 s{40+q}, s30, {2048*q}")
        e(f"buffer_load_dwordx2 {P(A[q])}, v1, s[12:15], s{40+q} offen")
    e.srd(8, 28, WT_BYTES, WT_OFF)
    WV = [104 + 2*q for q in range(8)]
    for q in range(8):
        e(f"buffer_load_dword v{WV[q]}, v2, s[8:11], s18 offen offset:{1024*q if q < 4 else 0}") if q < 4 else (
            e(f"s_add_u32 s31, s18, {1024*q}"), e(f"buffer_load_dword v{WV[q]}, v2, s[8:11], s31 offen"))
    e(f"s_mov_b32 s16, {SQH}")
    e(f"s_mov_b32 s17, {SQH}")
    e(f"s_mov_b32 s36, {f32hex(2.0**-22)}")
    e(f"s_mov_b32 s37, {f32hex(-2.0**-22)}")
    e("s_mov_b32 s38, 0")
    e("v_mov_b32 v4, 0")
    e("v_mov_b32 v3, v1")
    e("s_waitcnt vmcnt(8)")
    stamp(e, 1)
    e.label("K2_FFT")
    e("s_mov_b32 s20, 0")
    e(f"s_mov_b32 s22, {f32hex(-1.0/8)}")
    e.label("K2_PASS")
    pass8(e, 0, None, 2048, "K2", True, 8)
    for r in range(8):
        e(f"ds_read_b64 {P(A[r])}, v3 offset:{2048*r}")
    e("v_xor_b32 v3, 0x4000, v3")
    e("v_xor_b32 v4, 0x4000, v4")
    e("s_add_u32 s20, s20, 3")
    e("s_sub_u32 s22, s22, 0x01800000")
    e("s_cmp_lt_u32 s20, 9")
    e("s_waitcnt lgkmcnt(0)")
    e("s_cbranch_scc1 K2_PASS")
    e("v_cvt_f32_u32 v6, v0")
    e(f"v_mul_f32 v6, {f32hex(-1.0/2048)}, v6")
    ptwiddles(e, 6, range(1, 4), TW[0:3], 98)
    e(f"v_add_f32 v6, {f32hex(-0.125)}, v6")
    ptwiddles(e, 6, range(1, 4), TW[3:6], 98)
    for h in range(2):
        for r in range(1, 4):
            pcmul(e, A[2*r+h], A[2*r+h], TW[3*h+r-1], 94)
        pradix4(e, [A[h], A[2+h], A[4+h], A[6+h]], [B[h], B[2+h], B[4+h], B[6+h]], C)
    e("s_cmp_eq_u32 s38, 1")
    e("s_cbranch_scc1 K2_STORE")
    e("s_waitcnt vmcnt(0)")
    for q in range(8):
        e(f"v_and_b32 v{WV[q]+1}, 0xffff0000, v{WV[q]}")
        e(f"v_lshlrev_b32 v{WV[q]}, 16, v{WV[q]}")
        pcmul(e, B[q], B[q], WV[q], 94)
        e(f"v_pk_mul_f32 {P(A[q])}, {P(B[q])}, s[36:37]")
    e("s_mov_b32 s38, 1")
    e("s_branch K2_FFT")
    e.label("K2_STORE")
    for q in range(8):
        e(f"buffer_store_dwordx2 {P(B[q])}, v1, s[12:15], s{40+q} offen")
    if 'twice' in F.EXP:
        e("s_cmp_eq_u32 s89, 1")
        e("s_cbranch_scc1 K2_FIN")
        stamp(e, 2)
        e("s_mov_b32 s89, 1")
        e("s_waitcnt vmcnt(0)")
        e("s_barrier")
        e("s_branch K2_AGAIN")
        e.label("K2_FIN")
        stamp(e, 3)
        stamp_flush(e, 4, "K2")
    else:
        stamp(e, 2)
        stamp_flush(e, 3, "K2")
    e.label("K2_END")
    trace_end(e, 1, "K2")
    e("s_endpgm")
    gen_pf(e, "K2", 513, PF2[0], PF2[1], False)

def gen_k3(e):
    kernel_header(e, "k3_kernel")
    trace_begin(e)
    e("s_cmp_ge_u32 s2, 256")
    e("s_cbranch_scc1 K3_PF")
    e("s_load_dwordx2 s[4:5], s[0:1], 0")
    e("s_load_dwordx2 s[6:7], s[0:1], 72")
    e("s_load_dwordx2 s[28:29], s[0:1], 56")
    e("v_and_b32 v1, 63, v0")
    e("v_lshrrev_b32 v2, 6, v0")
    e("v_and_b32 v10, 7, v0")
    e("v_lshrrev_b32 v6, 3, v0")
    e("v_mul_u32_u24 v12, 4128, v10")
    e("s_lshl_b32 s18, s2, 6")
    e("v_lshlrev_b32 v13, 3, v10")
    e("v_add_u32 v13, s18, v13")
    e("s_waitcnt lgkmcnt(0)")
    e.srd(12, 6, XF_BYTES, XF_OFF)
    for i in range(5):
        e(f"v_add_u32 v7, {64*i}, v6")
        if i == 4: e("v_min_u32 v7, 256, v7")
        e("v_sub_u32 v8, 512, v7")
        e("v_lshl_add_u32 v7, v7, 14, v13")
        e("v_lshl_add_u32 v8, v8, 14, v13")
        e(f"buffer_load_dwordx2 v[{104+4*i}:{105+4*i}], v7, s[12:15], 0 offen")
        e(f"buffer_load_dwordx2 v[{106+4*i}:{107+4*i}], v8, s[12:15], 0 offen")
    e.srd(8, 4, X_BYTES)
    e("s_lshl_b32 s31, s2, 14")
    e("v_lshlrev_b32 v15, 11, v2")
    e("v_lshl_add_u32 v15, v1, 2, v15")
    for r in range(8):
        e(f"buffer_load_dword v{124+r}, v15, s[8:11], s31 offen offset:{256*r}")
    e.srd(32, 28, X_BYTES)
    e.srd(36, 6, LN2_BYTES, LN2_OFF)
    e(f"s_mov_b32 s16, {SQH}")
    e(f"s_mov_b32 s17, {SQH}")
    e(f"s_mov_b32 s19, {f32hex(1e-5)}")
    e("v_cmp_eq_u32 vcc, 0, v6")
    e("v_mov_b32 v60, 0")
    e("s_waitcnt vmcnt(8)")
    e("v_cndmask_b32 v105, v105, v60, vcc")
    e("v_cndmask_b32 v107, v107, v60, vcc")
    for i in range(5):
        y1, y2 = 104 + 4*i, 106 + 4*i
        if i == 4:
            e("v_cmp_gt_u32 vcc, 8, v0")
            e("s_and_saveexec_b64 s[24:25], vcc")
            e("s_cbranch_execz K3_SKIP")
        e(f"v_add_u32 v7, {64*i}, v6")
        e("v_cvt_f32_u32 v60, v7")
        e(f"v_mul_f32 v60, {f32hex(-1.0/1024)}, v60")
        e("v_cos_f32 v62, v60")
        e("v_sin_f32 v63, v60")
        e(f"v_pk_add_f32 v[50:51], {P(y1)}, {P(y2)} neg_hi:[0,1]")
        e(f"v_pk_add_f32 v[52:53], {P(y1)}, {P(y2)} neg_lo:[0,1]")
        pcmul(e, 54, 52, 62, 56)
        padd_rot(e, 56, 50, 54, -1)
        e("v_pk_add_f32 v[58:59], v[50:51], v[54:55] op_sel:[0,1] op_sel_hi:[1,0] neg_lo:[0,1] neg_hi:[1,1]")
        e("v_sub_u32 v8, 512, v7")
        e("v_and_b32 v8, 511, v8")
        e("v_lshl_add_u32 v7, v7, 3, v12")
        e("v_lshl_add_u32 v8, v8, 3, v12")
        e("ds_write_b64 v7, v[56:57]")
        e("ds_write_b64 v8, v[58:59]")
    e.label("K3_SKIP")
    e("s_mov_b64 exec, -1")
    e("v_mul_u32_u24 v4, 4128, v2")
    e("v_lshl_add_u32 v3, v1, 3, v4")
    e("s_waitcnt lgkmcnt(0)")
    e("s_barrier")
    for r in range(8):
        e(f"ds_read_b64 {P(A[r])}, v3 offset:{512*r}")
    e("s_waitcnt lgkmcnt(0)")
    fft512_loop(e, "K3")
    e("s_waitcnt vmcnt(0)")
    for r in range(8):
        e(f"v_cvt_pk_bf16_f32 v{B[r]}, v{B[r]}, -v{B[r]+1}")
        e(f"v_and_b32 v{B[r]+1}, 0xffff0000, v{B[r]}")
        e(f"v_lshlrev_b32 v{B[r]}, 16, v{B[r]}")
        e(f"v_lshlrev_b32 v94, 16, v{124+r}")
        e(f"v_and_b32 v95, 0xffff0000, v{124+r}")
        e(f"v_pk_add_f32 {P(B[r])}, {P(B[r])}, v[94:95]")
        e(f"v_cvt_pk_bf16_f32 v{104+r}, v{B[r]}, v{B[r]+1}")
        e(f"buffer_store_dword v{104+r}, v15, s[32:35], s31 offen offset:{256*r}")
        e(f"v_lshlrev_b32 v{B[r]}, 16, v{104+r}")
        e(f"v_and_b32 v{B[r]+1}, 0xffff0000, v{104+r}")
    ln16(e, B, 19)
    for r in range(8):
        e(f"v_cvt_pk_bf16_f32 v{20+r}, v{B[r]}, v{B[r]+1}")
        e(f"buffer_store_dword v{20+r}, v15, s[36:39], s31 offen offset:{256*r}")
    e.label("K3_END")
    trace_end(e, 2, "K3")
    e("s_endpgm")
    gen_pf(e, "K3", 256, PF3[0], PF3[1], True)
```

```python
from trace import trace_begin, trace_end
from emit import *
import fft_kernels as F
from gemm_kernels import *

def gelu4(e, g, u, out, t, sc1, sc0s):
    for hp in range(2):
        G, U = g + 2*hp, u + 2*hp
        e(f"v_cvt_pk_bf16_f32 v{t}, v{G}, v{G+1}")
        e(f"v_cvt_pk_bf16_f32 v{t+1}, v{U}, v{U+1}")
        e(f"v_lshlrev_b32 v{G}, 16, v{t}")
        e(f"v_and_b32 v{G+1}, 0xffff0000, v{t}")
        e(f"v_lshlrev_b32 v{U}, 16, v{t+1}")
        e(f"v_and_b32 v{U+1}, 0xffff0000, v{t+1}")
        T = t + 2 + 2*hp
        e(f"v_pk_mul_f32 v[{T}:{T+1}], v[{G}:{G+1}], v[{G}:{G+1}]")
        e(f"v_pk_fma_f32 v[{T}:{T+1}], v[{T}:{T+1}], s[{sc1}:{sc1+1}], v[{sc0s}:{sc0s+1}]")
        e(f"v_pk_mul_f32 v[{T}:{T+1}], v[{T}:{T+1}], v[{G}:{G+1}]")
        e(f"v_exp_f32 v{T}, v{T}")
        e(f"v_exp_f32 v{T+1}, v{T+1}")
    for hp in range(2):
        G, U = g + 2*hp, u + 2*hp
        T = t + 2 + 2*hp
        e(f"v_pk_add_f32 v[{T}:{T+1}], v[{T}:{T+1}], 1.0 op_sel_hi:[1,0]")
        e(f"v_rcp_f32 v{T}, v{T}")
        e(f"v_rcp_f32 v{T+1}, v{T+1}")
    for hp in range(2):
        G, U = g + 2*hp, u + 2*hp
        T = t + 2 + 2*hp
        e(f"v_pk_mul_f32 v[{G}:{G+1}], v[{G}:{G+1}], v[{T}:{T+1}]")
        e(f"v_cvt_pk_bf16_f32 v{t}, v{G}, v{G+1}")
        e(f"v_lshlrev_b32 v{G}, 16, v{t}")
        e(f"v_and_b32 v{G+1}, 0xffff0000, v{t}")
        e(f"v_pk_mul_f32 v[{G}:{G+1}], v[{G}:{G+1}], v[{U}:{U+1}]")
        e(f"v_cvt_pk_bf16_f32 v{out+hp}, v{G}, v{G+1}")

def gen_k4(e):
    F.kernel_header(e, "k4_kernel")
    trace_begin(e)
    BUF = 65536
    e("s_cmp_ge_u32 s2, 256")
    e("s_cbranch_scc1 K4_END")
    stamp(e, 0)
    e("s_load_dwordx4 s[4:7], s[0:1], 32")
    e("s_load_dwordx2 s[28:29], s[0:1], 72")
    e("v_and_b32 v1, 63, v0")
    e("v_lshrrev_b32 v2, 6, v0")
    e.nop(1)
    e("v_readfirstlane_b32 s27, v2")
    e("s_and_b32 s3, s2, 7")
    e("s_lshr_b32 s34, s2, 3")
    e("s_and_b32 s52, s34, 7")
    e("s_lshr_b32 s34, s34, 3")
    e("s_lshl_b32 s53, s3, 2")
    e("s_add_u32 s53, s53, s34")
    e("s_lshr_b32 s36, s27, 1")
    e("s_and_b32 s37, s27, 1")
    e("s_lshl_b32 s24, s52, 19")
    e("s_lshl_b32 s3, s27, 16")
    e("s_add_u32 s24, s24, s3")
    e("s_and_b32 s3, s27, 3")
    e("s_mul_i32 s25, s3, 16*7168")
    e("s_mul_i32 s3, s53, 224")
    e("s_add_u32 s25, s25, s3")
    e("s_lshl_b32 s30, s27, 12")
    e("s_add_u32 s31, s30, 32768")
    e("v_lshrrev_b32 v3, 3, v1")
    e("v_and_b32 v4, 7, v1")
    e("v_xor_b32 v4, v4, v3")
    e("v_lshlrev_b32 v4, 4, v4")
    e("v_lshl_add_u32 v10, v3, 11, v4")
    e("v_lshrrev_b32 v3, 4, v1")
    e("v_and_b32 v4, 15, v1")
    for b_ in range(2):
        e(f"v_or_b32 v5, {4*b_}, v3")
        e("v_lshlrev_b32 v5, 1, v5")
        e("v_xor_b32 v5, v5, v4")
        e(f"v_cmp_gt_u32 s[{40+2*b_}:{41+2*b_}], 14, v5")
        e("v_lshlrev_b32 v5, 4, v5")
        e("v_mul_u32_u24 v6, 7168, v3")
        e(f"v_add_u32 v{11+b_}, v6, v5")
    e("s_waitcnt lgkmcnt(0)")
    e.srd(8, 28, F.LN2_BYTES, F.LN2_OFF)
    e("s_cmp_ge_u32 s27, 4")
    e("s_cselect_b32 s4, s6, s4")
    e("s_cselect_b32 s5, s7, s5")
    e.srd(12, 4, WG_BYTES)
    e.srd(20, 28, HH_BYTES, HH_OFF)

    SETS = [dict(A=32, B=48), dict(A=76, B=92)]
    ACC = 128
    def dma(buf):
        g = []
        o = buf * BUF
        for ii in range(4):
            g.append([f"s_add_u32 m0, s30, {o + ii*1024}", f"s_add_u32 s33, s24, {ii*16384}",
                      f"buffer_load_dwordx4 v10, s[8:11], s33 offen lds"])
        for ii in range(4):
            b_ = (ii >> 1) & 1
            g.append([f"s_add_u32 m0, s31, {o + ii*1024}", f"s_add_u32 s33, s25, {ii*4*7168}",
                      f"s_mov_b64 exec, s[{40+2*b_}:{41+2*b_}]",
                      f"buffer_load_dwordx4 v{11+b_}, s[12:15], s33 offen lds", "s_mov_b64 exec, -1"])
        if 'nodma' in EXP: g = [['s_nop 0'] for _ in g]
        return g
    def advance():
        return ["s_add_u32 s24, s24, 128", f"s_add_u32 s25, s25, {64*7168}"]
    for grp in dma(0):
        for x in grp: e(x)
    for x in advance(): e(x)
    for grp in dma(1):
        for x in grp: e(x)
    for x in advance(): e(x)

    e("v_and_b32 v3, 15, v1")
    e("v_lshrrev_b32 v4, 4, v1")
    e("v_and_b32 v5, 7, v1")
    e("s_lshl_b32 s3, s36, 13")
    for hh in range(2):
        e(f"v_add_u32 v6, {4*hh}, v4")
        e("v_xor_b32 v6, v6, v5")
        e("v_lshlrev_b32 v6, 4, v6")
        e("v_lshl_add_u32 v6, v3, 7, v6")
        e(f"v_add_u32 v{14+hh}, s3, v6")
        e(f"v_add_u32 v{16+hh}, {BUF}, v{14+hh}")
    e("v_lshrrev_b32 v5, 2, v3")
    e("v_lshl_add_u32 v6, v4, 3, v5")
    e("v_lshlrev_b32 v6, 8, v6")
    e("v_and_b32 v7, 3, v1")
    e("v_lshl_add_u32 v6, v7, 3, v6")
    e("v_and_b32 v7, 1, v4")
    e("v_lshl_or_b32 v5, v7, 2, v5")
    tbl = [[(0,0),(0,1),(0,2),(1,0),(1,1),(1,2),(0,3)], [(0,4),(0,5),(0,6),(1,4),(1,5),(1,6),(1,3)]]
    e("s_cmp_eq_u32 s37, 1")
    for j in range(7):
        e(f"s_cselect_b32 s3, {tbl[1][j][1]}, {tbl[0][j][1]}")
        e(f"s_cselect_b32 s4, {tbl[1][j][0]}, {tbl[0][j][0]}")
        e("s_lshl_b32 s4, s4, 14")
        e("s_add_u32 s4, s4, 32768")
        e("s_cmp_eq_u32 s37, 1")
        e("v_xor_b32 v7, s3, v5")
        e("v_lshl_add_u32 v7, v7, 5, v6")
        e(f"v_add_u32 v{18+j}, s4, v7")
        e(f"v_add_u32 v{120+j}, {BUF}, v{18+j}")
    def reads(buf, hh, st):
        g = []
        S = SETS[st]
        for i in range(4):
            g.append([f"ds_read_b128 v[{S['A']+4*i}:{S['A']+4*i+3}], v{14+2*buf+hh} offset:{i*2048}"])
        for j in range(7):
            for p in range(2):
                off = hh * 8192 + p * 1024
                r = S['B'] + 4 * j + 2 * p
                g.append([f"ds_read_b64_tr_b16 v[{r}:{r+1}], v{(120 if buf else 18)+j} offset:{off}"])
        return g
    def mfmas(st):
        S = SETS[st]
        m = []
        for j in range(7):
            for i in range(4):
                acc = ACC + (i * 7 + j) * 4
                m.append(f"v_mfma_f32_16x16x32_bf16 v[{acc}:{acc+3}], v[{S['B']+4*j}:{S['B']+4*j+3}], v[{S['A']+4*i}:{S['A']+4*i+3}], v[{acc}:{acc+3}]")
        if 'nomfma' in EXP: m = ['s_nop 0' for _ in m]
        return m
    for i in range(112):
        e(f"v_mov_b32 v{ACC+i}, 0")
    e("s_waitcnt vmcnt(8)")
    e("s_barrier")
    for grp in reads(0, 0, 0):
        for x in grp: e(x)

    def tile(buf, do_dma, do_next):
        e("s_waitcnt lgkmcnt(0)")
        for x in interleave(mfmas(0), reads(buf, 1, 1), 0, 1): e(x)
        e("s_waitcnt vmcnt(0) lgkmcnt(0)")
        e("s_barrier")
        side = []
        if do_next: side += reads(buf ^ 1, 0, 0)
        if do_dma:
            d = dma(buf)
            merged = []
            rs = side
            while rs or d:
                if rs: merged.append(rs.pop(0))
                if rs: merged.append(rs.pop(0))
                if d: merged.append(d.pop(0))
            side = merged + [advance()]
        for x in interleave(mfmas(1), side, 0, 1): e(x)

    stamp(e, 1)
    e("s_mov_b32 s26, 0")
    e.label("K4_LOOP")
    tile(0, True, True)
    tile(1, True, True)
    e("s_add_u32 s26, s26, 1")
    e("s_cmp_lt_u32 s26, 7")
    e("s_cbranch_scc1 K4_LOOP")
    tile(0, False, True)
    tile(1, False, False)
    e.nop(16)
    stamp(e, 2)
    c1 = f32hex(-2*1.4426950408889634*0.7978845608028654*0.044715)
    c0 = f32hex(-2*1.4426950408889634*0.7978845608028654)
    e(f"s_mov_b32 s44, {c1}")
    e(f"s_mov_b32 s45, {c1}")
    e(f"v_mov_b32 v30, {c0}")
    e(f"v_mov_b32 v31, {c0}")
    e("s_barrier")
    e("s_lshl_b32 s3, s36, 12")
    e("v_lshlrev_b32 v8, 4, v1")
    e("v_add_u32 v8, s3, v8")
    e("s_cmp_eq_u32 s37, 1")
    e("s_cbranch_scc1 K4_NOEXP")
    for i in range(4):
        a6 = ACC + (i*7+6)*4
        e(f"ds_write_b128 v8, v[{a6}:{a6+3}] offset:{i*1024}")
    e("s_waitcnt lgkmcnt(0)")
    e.label("K4_NOEXP")
    e("s_barrier")
    e("s_cmp_eq_u32 s37, 0")
    e("s_cbranch_scc1 K4_NOIMP")
    for i in range(4):
        e(f"ds_read_b128 v[{32+4*i}:{35+4*i}], v8 offset:{i*1024}")
    e.label("K4_NOIMP")
    e("v_and_b32 v3, 15, v1")
    e("v_lshrrev_b32 v4, 4, v1")
    e("s_lshl_b32 s3, s36, 6")
    e("v_add_u32 v3, s3, v3")
    e("v_mul_u32_u24 v3, 7168, v3")
    e("s_lshl_b32 s3, s37, 7")
    e("v_lshl_add_u32 v3, v4, 3, v3")
    e("v_add_u32 v3, s3, v3")
    e("s_mul_i32 s42, s52, 256*7168")
    e("s_mul_i32 s3, s53, 224")
    e("s_add_u32 s42, s42, s3")
    for i in range(4):
        for j in range(3):
            g_ = ACC + (i*7+j)*4; u_ = ACC + (i*7+3+j)*4
            o = 64 + ((i*3+j) % 4) * 12
            gelu4(e, g_, u_, o+8, o, 44, 30)
            e(f"buffer_store_dwordx2 v[{o+8}:{o+9}], v3, s[20:23], s42 offen offset:{j*32}")
        e(f"s_add_u32 s42, s42, {16*7168}")
    e("s_cmp_eq_u32 s37, 0")
    e("s_cbranch_scc1 K4_DONE")
    e(f"s_sub_u32 s42, s42, {64*7168}")
    e("v_add_u32 v3, -32, v3")
    e("s_waitcnt lgkmcnt(0)")
    for i in range(4):
        u_ = ACC + (i*7+6)*4
        o = 64 + (i % 4) * 12
        gelu4(e, 32+4*i, u_, o+8, o, 44, 30)
        e(f"buffer_store_dwordx2 v[{o+8}:{o+9}], v3, s[20:23], s42 offen")
        e(f"s_add_u32 s42, s42, {16*7168}")
    e.label("K4_DONE")
    stamp(e, 3)
    stamp_flush(e, 4)
    e.label("K4_END")
    trace_end(e, 3, "K4")
    e("s_endpgm")
```

```python
from trace import trace_begin, trace_end
from emit import *
import fft_kernels as F

HH_OFF = 0x2000000
HH_BYTES = 2048 * 3584 * 2
WG_BYTES = 1024 * 3584 * 2
WD_BYTES = 3584 * 1024 * 2
PART_OFF = 0x3000000
PART_BYTES = 128 * 65536
FLAG_OFF = 0x4000000

def interleave(main, side, start=0, every=1):
    out = []
    si = 0
    for i, m in enumerate(main):
        out.append(m)
        if i >= start and (i - start) % every == 0 and si < len(side):
            out.extend(side[si]); si += 1
    while si < len(side):
        out.extend(side[si]); si += 1
    return out

def gelu_pair(e, g0, g1, u0, u1, out, tmp, sc1, sc0):
    t0, t1, t2, t3 = tmp
    e(f"v_cvt_pk_bf16_f32 v{t0}, v{g0}, v{g1}")
    e(f"v_cvt_pk_bf16_f32 v{t1}, v{u0}, v{u1}")
    e(f"v_lshlrev_b32 v{g0}, 16, v{t0}")
    e(f"v_and_b32 v{g1}, 0xffff0000, v{t0}")
    e(f"v_lshlrev_b32 v{u0}, 16, v{t1}")
    e(f"v_and_b32 v{u1}, 0xffff0000, v{t1}")
    e(f"v_mul_f32 v{t0}, v{g0}, v{g0}")
    e(f"v_mul_f32 v{t1}, v{g1}, v{g1}")
    e(f"v_fma_f32 v{t0}, v{t0}, s{sc1}, v{t2 if False else t0}") if False else None
    e(f"v_mov_b32 v{t2}, s{sc0}")
    e(f"v_fma_f32 v{t0}, v{t0}, s{sc1}, v{t2}")
    e(f"v_fma_f32 v{t1}, v{t1}, s{sc1}, v{t2}")
    e(f"v_mul_f32 v{t0}, v{t0}, v{g0}")
    e(f"v_mul_f32 v{t1}, v{t1}, v{g1}")
    e(f"v_exp_f32 v{t0}, v{t0}")
    e(f"v_exp_f32 v{t1}, v{t1}")
    e.nop(1)
    e(f"v_add_f32 v{t0}, 1.0, v{t0}")
    e(f"v_add_f32 v{t1}, 1.0, v{t1}")
    e(f"v_rcp_f32 v{t0}, v{t0}")
    e(f"v_rcp_f32 v{t1}, v{t1}")
    e.nop(1)
    e(f"v_mul_f32 v{g0}, v{g0}, v{t0}")
    e(f"v_mul_f32 v{g1}, v{g1}, v{t1}")
    e(f"v_cvt_pk_bf16_f32 v{t0}, v{g0}, v{g1}")
    e(f"v_lshlrev_b32 v{g0}, 16, v{t0}")
    e(f"v_and_b32 v{g1}, 0xffff0000, v{t0}")
    e(f"v_mul_f32 v{g0}, v{g0}, v{u0}")
    e(f"v_mul_f32 v{g1}, v{g1}, v{u1}")
    e(f"v_cvt_pk_bf16_f32 v{out}, v{g0}, v{g1}")

import os
EXP=os.environ.get('EXP','')
def stamp(e, i):
    if 'stamp' not in EXP: return
    e(f"s_memrealtime s[{60+2*i}:{61+2*i}]")
    e("s_waitcnt lgkmcnt(0)")
def stamp_flush(e, n, tag="K4"):
    if 'stamp' not in EXP: return
    e("s_load_dwordx2 s[80:81], s[0:1], 64")
    e("s_waitcnt lgkmcnt(0)")
    e.srd(84, 80, 256)
    e("s_cmp_lg_u32 s2, 37")
    e(f"s_cbranch_scc1 {tag}_NOSTAMP")
    e("v_mov_b32 v200, 0")
    for i in range(n):
        e(f"v_mov_b32 v201, s{60+2*i}")
        e(f"buffer_store_dword v201, v200, s[84:87], 0 offen offset:{4*i}")
    e.label(f"{tag}_NOSTAMP")
def gen_k4(e):
    F.kernel_header(e, "k4_kernel")
    trace_begin(e)
    BUF = 73728
    e("s_cmp_ge_u32 s2, 256")
    e("s_cbranch_scc1 K4_END")
    stamp(e, 0)
    e("s_load_dwordx4 s[4:7], s[0:1], 32")
    e("s_load_dwordx2 s[28:29], s[0:1], 72")
    e("v_and_b32 v1, 63, v0")
    e("v_lshrrev_b32 v2, 6, v0")
    e.nop(1)
    e("v_readfirstlane_b32 s27, v2")
    e("s_waitcnt lgkmcnt(0)")
    e.srd(8, 28, F.LN2_BYTES, F.LN2_OFF)
    e.srd(12, 4, WG_BYTES)
    e.srd(16, 6, WG_BYTES)
    e.srd(20, 28, HH_BYTES, HH_OFF)
    e("s_and_b32 s3, s2, 7")
    e("s_lshr_b32 s4, s2, 3")
    e("s_and_b32 s5, s3, 1")
    e("s_lshl_b32 s5, s5, 3")
    e("s_and_b32 s6, s4, 7")
    e("s_add_u32 s5, s5, s6")
    e("s_lshr_b32 s6, s3, 1")
    e("s_lshl_b32 s6, s6, 2")
    e("s_lshr_b32 s7, s4, 3")
    e("s_add_u32 s6, s6, s7")
    e("s_lshr_b32 s36, s27, 1")
    e("s_and_b32 s37, s27, 1")
    e("s_lshl_b32 s24, s5, 18")
    e("s_lshl_b32 s3, s27, 16")
    e("s_add_u32 s24, s24, s3")
    e("s_mov_b32 s25, 0")
    e("s_lshl_b32 s30, s27, 12")
    e("s_mul_i32 s31, s27, 7168")
    e("s_add_u32 s32, s31, 45056")
    e("s_add_u32 s31, s31, 16384")
    e("v_lshrrev_b32 v3, 3, v1")
    e("v_and_b32 v4, 7, v1")
    e("v_xor_b32 v4, v4, v3")
    e("v_lshlrev_b32 v4, 4, v4")
    e("v_lshl_add_u32 v10, v3, 11, v4")
    e("s_mul_i32 s3, s27, 448")
    e("v_add_u32 v3, s3, v1")
    e("s_mul_i32 s3, s6, 448")
    e(f"s_mov_b32 s4, {(2**32 + 27)//28}")
    for ii in range(7):
        e(f"v_add_u32 v4, {64*ii}, v3")
        e("v_mul_hi_u32 v5, v4, s4")
        e("v_mul_u32_u24 v6, 28, v5")
        e("v_sub_u32 v6, v4, v6")
        e("v_lshrrev_b32 v7, 3, v5")
        e("v_and_b32 v7, 1, v7")
        e("v_lshlrev_b32 v7, 1, v7")
        e("v_xor_b32 v6, v6, v7")
        e("v_mul_u32_u24 v5, 7168, v5")
        e("v_lshl_add_u32 v5, v6, 4, v5")
        e(f"v_add_u32 v{11+ii}, s3, v5")
    e("v_and_b32 v3, 15, v1")
    e("v_lshrrev_b32 v4, 4, v1")
    e("v_and_b32 v5, 7, v1")
    e("s_lshl_b32 s3, s36, 13")
    for hh in range(2):
        e(f"v_add_u32 v6, {4*hh}, v4")
        e("v_xor_b32 v6, v6, v5")
        e("v_lshlrev_b32 v6, 4, v6")
        e("v_lshl_add_u32 v6, v3, 7, v6")
        e(f"v_add_u32 v{18+hh}, s3, v6")
        e(f"v_add_u32 v{20+hh}, {BUF}, v{18+hh}")
    e("v_lshrrev_b32 v5, 2, v3")
    e("v_lshl_add_u32 v5, v4, 3, v5")
    e("v_mul_u32_u24 v5, 448, v5")
    e("v_and_b32 v6, 3, v1")
    e("v_lshl_add_u32 v5, v6, 3, v5")
    e("s_mul_i32 s3, s37, 224")
    e("s_add_u32 s3, s3, 16384")
    e("v_add_u32 v5, s3, v5")
    e("v_and_b32 v6, 1, v4")
    e("v_lshlrev_b32 v6, 5, v6")
    e("v_add_u32 v22, v5, v6")
    e("v_sub_u32 v23, v5, v6")
    e(f"v_add_u32 v24, {BUF}, v22")
    e(f"v_add_u32 v25, {BUF}, v23")
    e("s_cmp_eq_u32 s37, 1")
    e("s_cbranch_scc0 K4_NOSWAP")
    for a_, b_ in ((22, 23), (24, 25)):
        e(f"v_mov_b32 v6, v{a_}")
        e(f"v_mov_b32 v{a_}, v{b_}")
        e(f"v_mov_b32 v{b_}, v6")
    e.label("K4_NOSWAP")

    SETS = [dict(A=32, B=48), dict(A=104, B=120)]

    def dma(buf):
        g = []
        o = buf * BUF
        for ii in range(4):
            g.append([f"s_add_u32 m0, s30, {o + ii*1024}", f"s_add_u32 s33, s24, {ii*16384}",
                      f"buffer_load_dwordx4 v10, s[8:11], s33 offen lds"])
        for ii in range(7):
            g.append([f"s_add_u32 m0, s31, {o + ii*1024}", "s_nop 0",
                      f"buffer_load_dwordx4 v{11+ii}, s[12:15], s25 offen lds"])
            g.append([f"s_add_u32 m0, s32, {o + ii*1024}", "s_nop 0",
                      f"buffer_load_dwordx4 v{11+ii}, s[16:19], s25 offen lds"])
        if 'nodma' in EXP: g = [['s_nop 0'] for _ in g]
        return g
    def advance():
        return ["s_add_u32 s24, s24, 128", f"s_add_u32 s25, s25, {64*7168}"]
    def reads(buf, hh, st):
        g = []
        S = SETS[st]
        for i in range(4):
            g.append([f"ds_read_b128 v[{S['A']+4*i}:{S['A']+4*i+3}], v{18+2*buf+hh} offset:{i*2048}"])
        for j in range(14):
            sub, jj = j // 7, j % 7
            for p in range(2):
                off = sub * 28672 + hh * 14336 + p * 1792 + jj * 32
                r = S['B'] + 4 * j + 2 * p
                g.append([f"ds_read_b64_tr_b16 v[{r}:{r+1}], v{22+2*buf+(jj&1)} offset:{off}"])
        if 'noreads' in EXP: g = [['s_nop 0'] for _ in g]
        if 'notr' in EXP: g = [x if 'tr' not in x[0] else ['s_nop 0'] for x in g]
        return g
    def mfmas(st):
        S = SETS[st]
        m = []
        for j in range(14):
            for i in range(4):
                acc = (i * 14 + j) * 4
                m.append(f"v_mfma_f32_16x16x32_bf16 a[{acc}:{acc+3}], v[{S['B']+4*j}:{S['B']+4*j+3}], v[{S['A']+4*i}:{S['A']+4*i+3}], a[{acc}:{acc+3}]")
        if 'nomfma' in EXP: m = ['s_nop 0' for _ in m]
        return m

    for grp in dma(0):
        for x in grp: e(x)
    for x in advance(): e(x)
    for grp in dma(1):
        for x in grp: e(x)
    for x in advance(): e(x)
    for i in range(224):
        e(f"v_accvgpr_write_b32 a{i}, 0")
    e("s_waitcnt vmcnt(18)")
    e("s_barrier")
    for grp in reads(0, 0, 0):
        for x in grp: e(x)

    def tile(buf, do_dma, do_next):
        e("s_waitcnt lgkmcnt(0)")
        for x in interleave(mfmas(0), reads(buf, 1, 1), 0, 1): e(x)
        e("s_waitcnt lgkmcnt(0)")
        if 'novm' not in EXP: e("s_waitcnt vmcnt(0)")
        if 'nobar' not in EXP: e("s_barrier")
        side = []
        if do_next: side += reads(buf ^ 1, 0, 0)
        if do_dma:
            d = dma(buf)
            merged = []
            rs = side;
            if 'dmafirst' in EXP:
                merged = d + rs; rs = []; d = []
            while rs or d:
                if rs: merged.append(rs.pop(0))
                if d: merged.append(d.pop(0))
            side = merged + [advance()]
        for x in interleave(mfmas(1), side, 0, 1): e(x)

    stamp(e, 1)
    e("s_mov_b32 s26, 0")
    e.label("K4_LOOP")
    tile(0, True, True)
    tile(1, True, True)
    e("s_add_u32 s26, s26, 1")
    e("s_cmp_lt_u32 s26, 7")
    e("s_cbranch_scc1 K4_LOOP")
    tile(0, False, True)
    tile(1, False, False)
    e.nop(16)
    stamp(e, 2)
    e(f"s_mov_b32 s40, {f32hex(-2*1.4426950408889634*0.7978845608028654*0.044715)}")
    e(f"s_mov_b32 s41, {f32hex(-2*1.4426950408889634*0.7978845608028654)}")
    e("v_and_b32 v3, 15, v1")
    e("v_lshrrev_b32 v4, 4, v1")
    e("s_lshl_b32 s3, s36, 6")
    e("v_add_u32 v3, s3, v3")
    e("v_mul_u32_u24 v3, 7168, v3")
    e("s_mul_i32 s3, s37, 224")
    e("v_lshl_add_u32 v3, v4, 3, v3")
    e("v_add_u32 v3, s3, v3")
    e("s_mul_i32 s42, s5, 128*7168")
    e("s_mul_i32 s3, s6, 448")
    e("s_add_u32 s42, s42, s3")
    for i in range(4):
        for j in range(7):
            ag = (i * 14 + j) * 4
            au = (i * 14 + 7 + j) * 4
            base = 32 + ((i * 7 + j) % 4) * 16
            for v in range(4):
                e(f"v_accvgpr_read_b32 v{base+v}, a{ag+v}")
                e(f"v_accvgpr_read_b32 v{base+4+v}, a{au+v}")
            gelu_pair(e, base, base+1, base+4, base+5, base+12, (base+8, base+9, base+10, base+11), 40, 41)
            gelu_pair(e, base+2, base+3, base+6, base+7, base+13, (base+8, base+9, base+10, base+11), 40, 41)
            e(f"buffer_store_dwordx2 v[{base+12}:{base+13}], v3, s[20:23], s42 offen offset:{j*32}")
        e(f"s_add_u32 s42, s42, {16*7168}")
    stamp(e, 3)
    stamp_flush(e, 4)
    e.label("K4_END")
    trace_end(e, 3, "K4")
    e("s_endpgm")

def add(stages, e, launches, kds, kd):
    if 'k4' in stages:
        if 'oldk4' in EXP:
            launches.append("; @launch kernel=k4_kernel grid=(256,1,1) block=(256,1,1) lds=147456")
            gen_k4(e); kds.append(kd("k4_kernel", 480, 102, 256))
        else:
            import gemm1b
            launches.append("; @launch kernel=k4_kernel grid=(256,1,1) block=(512,1,1) lds=131072")
            gemm1b.gen_k4(e); kds.append(kd("k4_kernel", 256, 102, 256))
    if 'k5' in stages:
        import gemm2
        gemm2.add(stages, e, launches, kds, kd)
```

```python
from trace import trace_begin, trace_end
from emit import *
import fft_kernels as F
from gemm_kernels import *

NT0 = 24

def gen_k5(e):
    F.kernel_header(e, "k5_kernel")
    trace_begin(e)
    BUF = 32768
    e("s_cmp_ge_u32 s2, 256")
    e("s_cbranch_scc1 K5_END")
    stamp(e, 0)
    e("s_load_dwordx4 s[4:7], s[0:1], 48")
    e("s_load_dwordx4 s[28:31], s[0:1], 64")
    e("v_and_b32 v1, 63, v0")
    e("v_lshrrev_b32 v2, 6, v0")
    e.nop(1)
    e("v_readfirstlane_b32 s27, v2")
    e("s_and_b32 s3, s2, 7")
    e("s_lshr_b32 s34, s2, 3")
    e("s_lshr_b32 s54, s3, 1")
    e("s_and_b32 s54, s54, 1")
    e("s_lshl_b32 s54, s54, 3")
    e("s_and_b32 s35, s34, 7")
    e("s_add_u32 s52, s54, s35")
    e("s_lshr_b32 s35, s3, 2")
    e("s_lshl_b32 s35, s35, 2")
    e("s_lshr_b32 s34, s34, 3")
    e("s_add_u32 s53, s35, s34")
    e("s_lshr_b32 s36, s27, 1")
    e("s_and_b32 s37, s27, 1")
    e("s_lshl_b32 s39, s52, 3")
    e("s_add_u32 s39, s39, s53")
    e("s_lshr_b32 s40, s39, 1")
    e("s_lshl_b32 s40, s40, 2")
    e("s_and_b32 s41, s39, 1")
    e("s_lshl_b32 s41, s41, 4")
    e("s_lshl_b32 s42, 1, s41")
    e("s_lshl_b32 s43, 0x100, s41")
    e("s_waitcnt lgkmcnt(0)")
    e.srd(44, 28, 256)
    e("s_cmp_lg_u32 s27, 0")
    e("s_cbranch_scc1 K5_TK")
    e("v_mov_b32 v6, s42")
    e("v_mov_b32 v7, s40")
    e("s_mov_b64 exec, 1")
    e("buffer_atomic_add v6, v7, s[44:47], 0 offen sc0 sc1")
    e("s_mov_b64 exec, -1")
    e.label("K5_TK")
    e.srd(8, 30, HH_BYTES, HH_OFF)
    e.srd(12, 4, WD_BYTES)
    e.srd(16, 6, F.X_BYTES)
    e.srd(20, 30, PART_BYTES, PART_OFF)
    e("s_lshl_b32 s30, s27, 12")
    e("s_add_u32 s31, s30, 16384")
    e("v_lshrrev_b32 v3, 3, v1")
    e("v_and_b32 v4, 7, v1")
    e("v_xor_b32 v4, v4, v3")
    e("v_lshlrev_b32 v4, 4, v4")
    e("v_mul_u32_u24 v3, 7168, v3")
    e("v_add_u32 v10, v3, v4")
    e("v_lshrrev_b32 v3, 4, v1")
    e("v_and_b32 v4, 15, v1")
    for b_ in range(2):
        e(f"v_or_b32 v5, {4*b_}, v3")
        e("v_lshlrev_b32 v5, 1, v5")
        e("v_xor_b32 v5, v5, v4")
        e("v_lshlrev_b32 v5, 4, v5")
        e(f"v_lshl_add_u32 v{11+b_}, v3, 11, v5")
    e("v_and_b32 v3, 15, v1")
    e("v_lshrrev_b32 v4, 4, v1")
    e("v_and_b32 v5, 7, v1")
    e("s_lshl_b32 s3, s36, 13")
    for hh in range(2):
        e(f"v_add_u32 v8, {4*hh}, v4")
        e("v_xor_b32 v8, v8, v5")
        e("v_lshlrev_b32 v8, 4, v8")
        e("v_lshl_add_u32 v8, v3, 7, v8")
        e(f"v_add_u32 v{14+hh}, s3, v8")
        e(f"v_add_u32 v{16+hh}, {2*BUF}, v{14+hh}")
    e("v_lshrrev_b32 v5, 2, v3")
    e("v_lshl_add_u32 v8, v4, 3, v5")
    e("v_lshlrev_b32 v8, 8, v8")
    e("v_and_b32 v9, 3, v1")
    e("v_lshl_add_u32 v8, v9, 3, v8")
    e("v_add_u32 v8, 16384, v8")
    e("v_and_b32 v9, 1, v4")
    e("v_lshl_or_b32 v5, v9, 2, v5")
    e("s_lshl_b32 s3, s37, 2")
    for j in range(4):
        e(f"s_add_u32 s4, s3, {j}")
        e("v_xor_b32 v9, s4, v5")
        e(f"v_lshl_add_u32 v{18+j}, v9, 5, v8")
        e(f"v_add_u32 v{22+j}, {2*BUF}, v{18+j}")
    e("s_lshl_b32 s3, s36, 6")
    e("v_add_u32 v3, s3, v3")
    e("v_lshlrev_b32 v3, 11, v3")
    e("s_lshl_b32 s3, s37, 7")
    e("v_lshl_add_u32 v3, v4, 3, v3")
    e("v_add_u32 v26, s3, v3")
    e("v_lshlrev_b32 v27, 4, v1")
    e("s_and_b32 s56, s2, 1")
    e("s_mov_b32 s55, 0")
    e("s_mov_b32 s26, 5")
    e(f"s_mul_i32 s35, s56, {55*64}")
    e("s_mov_b32 s57, 128")
    e(f"s_mov_b32 s58, {64*2048}")
    e("s_cmp_eq_u32 s56, 1")
    e("s_cselect_b32 s57, -128, s57")
    e(f"s_cselect_b32 s58, {-64*2048}, s58")
    if 'sametile' in EXP:
        e("s_mov_b32 s52, 0"); e("s_mov_b32 s53, 0")
    e("s_lshl_b32 s24, s52, 7")
    e("s_lshl_b32 s3, s27, 5")
    e("s_add_u32 s24, s24, s3")
    e("s_mul_i32 s24, s24, 7168")
    e("s_lshl_b32 s3, s35, 1")
    e("s_add_u32 s24, s24, s3")
    e("s_lshl_b32 s3, s27, 4")
    e("s_add_u32 s25, s35, s3")
    e("s_lshl_b32 s25, s25, 11")
    e("s_lshl_b32 s3, s53, 8")
    e("s_add_u32 s25, s25, s3")
    e("v_mov_b32 v28, 0x20000")

    SETS = [dict(A=32, B=48), dict(A=64, B=80)]
    ACC = 128
    def dma(buf):
        g = []
        o = buf * BUF
        for ii in range(4):
            g.append([f"s_add_u32 m0, s30, {o + ii*1024}", f"s_add_u32 s33, s24, {ii*8*7168}",
                      f"buffer_load_dwordx4 v10, s[8:11], s33 offen lds"])
        for ii in range(4):
            g.append([f"s_add_u32 m0, s31, {o + ii*1024}", f"s_add_u32 s33, s25, {ii*8192}",
                      f"buffer_load_dwordx4 v{11+(ii>>1)}, s[12:15], s33 offen lds"])
        if 'nodma' in EXP: g = [['s_nop 0'] for _ in g]
        return g
    def advance():
        return ["s_add_u32 s24, s24, s57", "s_add_u32 s25, s25, s58"]
    def reads(buf, hh, st):
        g = []
        S = SETS[st]
        bh, bl = buf >> 1, buf & 1
        for i in range(4):
            g.append([f"ds_read_b128 v[{S['A']+4*i}:{S['A']+4*i+3}], v{14+2*bh+hh} offset:{bl*BUF+i*2048}"])
        for j in range(4):
            for p in range(2):
                off = bl * BUF + hh * 8192 + p * 1024
                r = S['B'] + 4 * j + 2 * p
                g.append([f"ds_read_b64_tr_b16 v[{r}:{r+1}], v{18+4*bh+j} offset:{off}"])
        return g
    def mfmas(st):
        S = SETS[st]
        m = []
        for j in range(4):
            for i in range(4):
                acc = ACC + (i * 4 + j) * 4
                m.append(f"v_mfma_f32_16x16x32_bf16 v[{acc}:{acc+3}], v[{S['B']+4*j}:{S['B']+4*j+3}], v[{S['A']+4*i}:{S['A']+4*i+3}], v[{acc}:{acc+3}]")
        if 'nomfma' in EXP: m = ['s_nop 0' for _ in m]
        return m
    for t_ in range(3):
        for grp in dma(t_):
            for x in grp: e(x)
        for x in advance(): e(x)
    for i in range(64):
        e(f"v_mov_b32 v{ACC+i}, 0")
    e("s_waitcnt vmcnt(16)")
    e("s_barrier")
    for grp in reads(0, 0, 0):
        for x in grp: e(x)

    def tile(buf, do_dma, vm, last=False):
        e("s_waitcnt lgkmcnt(0)")
        for x in interleave(mfmas(0), reads(buf, 1, 1), 0, 1): e(x)
        if last:
            e("s_waitcnt lgkmcnt(0)")
            for x in mfmas(1): e(x)
            return
        e(f"s_waitcnt vmcnt({vm}) lgkmcnt(0)")
        e("s_barrier")
        side = reads((buf + 1) & 3, 0, 0)
        if do_dma:
            d = dma((buf + 3) & 3)
            merged = []
            rs = side
            while rs or d:
                if rs: merged.append(rs.pop(0))
                if d: merged.append(d.pop(0))
            side = merged + [advance()]
        for x in interleave(mfmas(1), side, 0, 1): e(x)

    def loads_ph():
        e("s_lshl_b32 s34, s39, 16")
        e("s_lshl_b32 s3, s27, 14")
        e("s_add_u32 s34, s34, s3")
        for q in range(16):
            e(f"s_add_u32 s33, s34, {q*1024}")
            e(f"buffer_load_dwordx4 v[{192+4*q}:{192+4*q+3}], v27, s[20:23], s33 offen sc1")
        e("s_lshl_b32 s42, s52, 18")
        e("s_lshl_b32 s3, s53, 8")
        e("s_add_u32 s42, s42, s3")
        for i in range(4):
            e(f"s_add_u32 s{48+i}, s42, {i*16*2048}")
        for i in range(4):
            for j in range(4):
                r = 96 + (i * 4 + j) * 2
                e(f"buffer_load_dwordx2 v[{r}:{r+1}], v26, s[16:19], s{48+i} offen offset:{j*32}")

    stamp(e, 1)
    e.label("K5_LOOP")
    for b_ in range(4):
        tile(b_, True, 8)
    e("s_cmp_lg_u32 s27, 0")
    e("s_cbranch_scc1 K5_NOTK")
    e("s_mov_b64 exec, 1")
    e("ds_write_b32 v28, v6")
    e("s_mov_b64 exec, -1")
    e.label("K5_NOTK")
    e("s_sub_u32 s26, s26, 1")
    e("s_cmp_lg_u32 s26, 0")
    e("s_cbranch_scc1 K5_LOOP")
    e("s_cmp_lg_u32 s55, 0")
    e("s_cbranch_scc1 K5_TAIL")
    e("s_mov_b32 s55, 1")
    e("ds_read_b32 v29, v28")
    e("s_waitcnt lgkmcnt(0)")
    e.nop(1)
    e("v_readfirstlane_b32 s38, v29")
    e.nop(4)
    e("s_lshr_b32 s38, s38, s41")
    e("s_and_b32 s38, s38, 1")
    e(f"s_mov_b32 s26, {(56-NT0-24)//4 + 0}")
    e("s_cmp_eq_u32 s38, 1")
    e("s_cbranch_scc1 K5_LOOP")
    e.label("K5_TAIL")
    e("s_mov_b32 s59, 0")
    tile(0, True, 8)
    e("v_mov_b32 v7, s40")
    e("buffer_load_dword v29, v7, s[44:47], 0 offen sc1")
    tile(1, False, 9)
    e("s_cmp_eq_u32 s38, 0")
    e("s_cbranch_scc1 K5_NOPRE")
    e("s_waitcnt vmcnt(0)")
    e("v_readfirstlane_b32 s35, v29")
    e.nop(4)
    e("s_and_b32 s35, s35, s43")
    e("s_cmp_eq_u32 s35, 0")
    e("s_cbranch_scc1 K5_NOPRE")
    e("s_mov_b32 s59, 1")
    loads_ph()
    tile(2, False, 32)
    tile(3, False, 0, last=True)
    e.nop(16)
    stamp(e, 2)
    e("s_branch K5_GOT")
    e.label("K5_NOPRE")
    tile(2, False, 0)
    tile(3, False, 0, last=True)
    e.nop(16)
    stamp(e, 2)
    e("s_lshl_b32 s34, s39, 16")
    e("s_lshl_b32 s3, s27, 14")
    e("s_add_u32 s34, s34, s3")
    e("s_cmp_eq_u32 s38, 1")
    e("s_cbranch_scc1 K5_SECOND")
    for q in range(16):
        e(f"s_add_u32 s33, s34, {q*1024}")
        e(f"buffer_store_dwordx4 v[{ACC+4*q}:{ACC+4*q+3}], v27, s[20:23], s33 offen sc1")
    e("s_waitcnt vmcnt(0)")
    e("s_barrier")
    e("s_cmp_lg_u32 s27, 0")
    e("s_cbranch_scc1 K5_END")
    e("v_mov_b32 v6, s43")
    e("v_mov_b32 v7, s40")
    e("s_mov_b64 exec, 1")
    e("buffer_atomic_add v6, v7, s[44:47], 0 offen sc1")
    e("s_waitcnt vmcnt(0)")
    e("s_branch K5_END")
    e.label("K5_SECOND")
    e("s_cmp_eq_u32 s59, 1")
    e("s_cbranch_scc1 K5_GOT")
    e("v_mov_b32 v7, s40")
    e.label("K5_POLL")
    e("buffer_load_dword v6, v7, s[44:47], 0 offen sc1")
    e("s_waitcnt vmcnt(0)")
    e.nop(1)
    e("v_readfirstlane_b32 s35, v6")
    e.nop(4)
    e("s_and_b32 s35, s35, s43")
    e("s_cmp_lg_u32 s35, 0")
    e("s_cbranch_scc1 K5_POLL_DONE")
    e("s_sleep 2")
    e("s_branch K5_POLL")
    e.label("K5_POLL_DONE")
    loads_ph()
    e.label("K5_GOT")
    stamp(e, 3)
    e("s_waitcnt vmcnt(0)")
    for q in range(16):
        i, j = q // 4, q % 4
        a_ = ACC + q * 4
        r = 96 + q * 2
        e(f"v_pk_add_f32 v[{a_}:{a_+1}], v[{a_}:{a_+1}], v[{192+4*q}:{192+4*q+1}]")
        e(f"v_pk_add_f32 v[{a_+2}:{a_+3}], v[{a_+2}:{a_+3}], v[{192+4*q+2}:{192+4*q+3}]")
        for hp in range(2):
            e(f"v_cvt_pk_bf16_f32 v6, v{a_+2*hp}, v{a_+2*hp+1}")
            e(f"v_lshlrev_b32 v8, 16, v{r+hp}")
            e(f"v_and_b32 v9, 0xffff0000, v{r+hp}")
            e(f"v_and_b32 v7, 0xffff0000, v6")
            e(f"v_lshlrev_b32 v6, 16, v6")
            e(f"v_pk_add_f32 v[6:7], v[6:7], v[8:9]")
            e(f"v_cvt_pk_bf16_f32 v{r+hp}, v6, v7")
        e(f"buffer_store_dwordx2 v[{r}:{r+1}], v26, s[16:19], s{48+i} offen offset:{j*32}")
    stamp(e, 4)
    if 'stamp' in EXP:
        e("s_and_b32 s2, s2, 0xfe")
        e("s_add_u32 s2, s2, 1")
    stamp_flush(e, 5, "K5")
    e.label("K5_END")
    trace_end(e, 4, "K5")
    e("s_endpgm")

def add(stages, e, launches, kds, kd):
    launches.append("; @launch kernel=k5_kernel grid=(256,1,1) block=(256,1,1) lds=131088")
    gen_k5(e); kds.append(kd("k5_kernel", 256, 102))
```

```python
import os
EXP=os.environ.get('EXP','')
def trace_begin(e):
    if 'trace' not in EXP: return
    e("s_mov_b32 s101, s2")
    e("s_memrealtime s[96:97]")
    e("s_waitcnt lgkmcnt(0)")
def trace_end(e, kidx, tag):
    if 'trace' not in EXP: return
    e("s_mov_b64 exec, -1")
    e("s_waitcnt vmcnt(0) lgkmcnt(0)")
    e("s_memrealtime s[98:99]")
    e("s_load_dwordx2 s[90:91], s[0:1], 72")
    e("s_waitcnt lgkmcnt(0)")
    e.srd(92, 90, 0x100000, 0x6000000 + kidx * 0x10000)
    e("s_lshl_b32 s100, s101, 3")
    e("v_mov_b32 v2, s100")
    e("v_mov_b32 v4, s96")
    e("v_mov_b32 v5, s98")
    e("s_mov_b64 exec, 1")
    e("buffer_store_dwordx2 v[4:5], v2, s[92:95], 0 offen")
```

```python
import sys, os
sys.path.insert(0, 'gen')
from emit import *
import fft_kernels as F0
import fft2 as F

HEADER = open('sequential_preLN__spectral_gfnet__glu_gated_geglu__prompt.s.ref').read().split('; Override launch geometry')[0]

def kd(name, vgpr, sgpr=102, accum=None):
    if accum is None:
        accum = (vgpr + 3) // 4 * 4
    return f""".amdhsa_kernel {name}
  .amdhsa_next_free_vgpr {vgpr}
  .amdhsa_next_free_sgpr {sgpr}
  .amdhsa_accum_offset {accum}
  .amdhsa_group_segment_fixed_size 0
  .amdhsa_kernarg_size 80
  .amdhsa_user_sgpr_count 2
  .amdhsa_user_sgpr_kernarg_segment_ptr 1
  .amdhsa_system_sgpr_workgroup_id_x 1
  .amdhsa_float_denorm_mode_32 3
.end_amdhsa_kernel
"""

def build(stages):
    e = E()
    launches = []
    kds = []
    if 'k1' in stages:
        launches.append("; @launch kernel=k1_kernel grid=(416,1,1) block=(512,1,1) lds=33280")
        F.gen_k1(e); kds.append(kd("k1_kernel", 128))
    if 'k2' in stages:
        launches.append("; @launch kernel=k2_kernel grid=(993,1,1) block=(256,1,1) lds=32768")
        F.gen_k2(e); kds.append(kd("k2_kernel", 128))
    if 'k3' in stages:
        launches.append("; @launch kernel=k3_kernel grid=(256,1,1) block=(512,1,1) lds=33024")
        F.gen_k3(e); kds.append(kd("k3_kernel", 136))
    try:
        import gemm_kernels as G
        G.add(stages, e, launches, kds, kd)
    except ImportError:
        pass
    out = HEADER + "\n".join(launches) + "\n" + '.amdgcn_target "amdgcn-amd-amdhsa--gfx950"\n.text\n' + e.text()
    out += '.section .rodata,"a"\n.p2align 6\n' + "".join(kds)
    return out

if __name__ == "__main__":
    stages = sys.argv[2:] if len(sys.argv) > 2 else ['k1', 'k2', 'k3', 'k4', 'k5']
    open(sys.argv[1], 'w').write(build(stages))
```
